```python
import torch

def _softmax(x, axis=-1):
    return torch.softmax(x, dim=axis)
def _gelu(x):
    return torch.nn.functional.gelu(x, approximate="tanh")
def _silu(x):
    return torch.nn.functional.silu(x)
def _sigmoid(x):
    return torch.sigmoid(x)
def _layernorm(x, axis=-1, eps=1e-5):
    m = x.mean(dim=axis, keepdim=True)
    v = x.var(dim=axis, keepdim=True, unbiased=False)
    return (x - m) / torch.sqrt(v + eps)
def _scatter_add(tgt, idx, src, axis=0):
    return tgt.clone().index_add_(axis, idx, src)
def _segment_sum(src, seg, n):
    out = torch.zeros((n,) + src.shape[1:], dtype=src.dtype)
    return out.index_add_(0, seg, src)
def _pad(x, pw):
    flat = tuple(v for pair in reversed(pw) for v in pair)
    return torch.nn.functional.pad(x, flat)

kernel_name = 'gated_mix__ssm_conv_s5__dense_activation_relu__prompt'

def setup_inputs():

    _w = (lambda a: (lambda t: t.to(torch.bfloat16) if t.is_floating_point() else t)(torch.as_tensor(a)))
    def _A_setup():
        B, S, D = 1, 2048, 448
        P = D
        Lambda_re = -0.5 * (lambda _x: torch.exp(torch.as_tensor(_x)))((lambda *s: torch.randn(*s, dtype=torch.bfloat16) * 0.8)(P))
        Lambda_im = (lambda *s: torch.randn(*s, dtype=torch.bfloat16) * 0.8)(P) * 1.0
        B_re = (lambda *s: torch.randn(*s, dtype=torch.bfloat16) * 0.8)(P, D) * (D ** -0.5)
        B_im = (lambda *s: torch.randn(*s, dtype=torch.bfloat16) * 0.8)(P, D) * (D ** -0.5)
        C_re = (lambda *s: torch.randn(*s, dtype=torch.bfloat16) * 0.8)(D, P) * (P ** -0.5)
        C_im = (lambda *s: torch.randn(*s, dtype=torch.bfloat16) * 0.8)(D, P) * (P ** -0.5)
        log_dt = (lambda *s: torch.randn(*s, dtype=torch.bfloat16) * 0.8)(P) * 0.3 - 2.0
        Dskip = (lambda *s: torch.randn(*s, dtype=torch.bfloat16) * 0.8)(D)
        return {
            "x": _w((lambda *s: torch.randn(*s, dtype=torch.bfloat16) * 0.05)(B, S, D)),
            "Lambda_re": _w(Lambda_re),
            "Lambda_im": _w(Lambda_im),
            "B_re": _w(B_re),
            "B_im": _w(B_im),
            "C_re": _w(C_re),
            "C_im": _w(C_im),
            "log_dt": _w(log_dt),
            "Dskip": _w(Dskip),
        }
    _A_in = _A_setup()

    def _B_setup():
        B, S, D, Dff = 1, 2048, 448, 1792
        return {
            "x": _w((lambda *s: torch.randn(*s, dtype=torch.bfloat16) * 0.05)(B, S, D)),
            "w1": _w((lambda *s: torch.randn(*s, dtype=torch.bfloat16) * 0.05)(D, Dff)),
            "w2": _w((lambda *s: torch.randn(*s, dtype=torch.bfloat16) * 0.05)(Dff, D)),
        }
    _B_in = _B_setup()

    return {
        "A_x": _A_in["x"],
        "A_Lambda_re": _A_in["Lambda_re"],
        "A_Lambda_im": _A_in["Lambda_im"],
        "A_B_re": _A_in["B_re"],
        "A_B_im": _A_in["B_im"],
        "A_C_re": _A_in["C_re"],
        "A_C_im": _A_in["C_im"],
        "A_log_dt": _A_in["log_dt"],
        "A_Dskip": _A_in["Dskip"],
        "B_x": _B_in["x"],
        "B_w1": _B_in["w1"],
        "B_w2": _B_in["w2"],
        "gate_w": _w((lambda *s: torch.randn(*s, dtype=torch.bfloat16) * 0.05)(448) * 16.0),
    }

def reference(A_x, A_Lambda_re, A_Lambda_im, A_B_re, A_B_im, A_C_re, A_C_im, A_log_dt, A_Dskip, B_x, B_w1, B_w2, gate_w):
    def _A_ref(x, Lambda_re, Lambda_im, B_re, B_im, C_re, C_im, log_dt, Dskip):
        Bsz, L, H = x.shape
        Lam = Lambda_re + 1j * Lambda_im
        Bmat = B_re + 1j * B_im
        Cmat = C_re + 1j * C_im
        dt = torch.exp(log_dt)
        Lam_bar = torch.exp(dt * Lam)
        B_bar = ((Lam_bar - 1.0) / Lam)[:, None] * Bmat
        Bu = torch.einsum("bld,pd->blp", x + 0j, B_bar)
        h = torch.zeros_like(Bu[:, 0, :])
        hs = []
        for t in range(L):
            h = Lam_bar[None, :] * h + Bu[:, t, :]
            hs.append(h)
        hseq = torch.stack(hs, 1)
        y = 2.0 * torch.einsum("blp,dp->bld", hseq, Cmat).real + x * Dskip[None, None, :]
        return y

    def _B_ref(x, w1, w2):
        h = torch.einsum("bsd,df->bsf", x, w1)
        zero = torch.zeros_like(h)
        h = torch.maximum(h, zero)
        return torch.einsum("bsf,fd->bsd", h, w2)

    x = A_x
    g = _sigmoid((x * gate_w).sum(-1, keepdims=True))
    a = _A_ref(x, A_Lambda_re, A_Lambda_im, A_B_re, A_B_im, A_C_re, A_C_im, A_log_dt, A_Dskip)
    b = _B_ref(x, B_w1, B_w2)
    return g * a + (1 - g) * b
```

```python
import re

REG_RE = re.compile(r'\b([vas])\[(\d+):(\d+)\]|\b([vas])(\d+)\b|\b(vcc|exec|m0|scc)\b')

TRANS = ('v_exp_f32', 'v_log_f32', 'v_rcp_f32', 'v_rsq_f32', 'v_sqrt_f32', 'v_sin_f32', 'v_cos_f32')


def regs_of(tok):
    out = set()
    for m in REG_RE.finditer(tok):
        if m.group(1):
            for i in range(int(m.group(2)), int(m.group(3)) + 1):
                out.add(m.group(1) + str(i))
        elif m.group(4):
            out.add(m.group(4) + m.group(5))
        else:
            out.add(m.group(6))
    return out


def split_ops(s):
    ops, depth, cur = [], 0, ''
    for ch in s:
        if ch == '[':
            depth += 1
        if ch == ']':
            depth -= 1
        if ch == ',' and depth == 0:
            ops.append(cur.strip())
            cur = ''
        else:
            cur += ch
    if cur.strip():
        ops.append(cur.strip())
    return ops


class I:
    def __init__(self, text, tag=None, lds=None, note=None):
        self.text = text.strip()
        self.tag = tag
        self.lds = lds
        self.note = note
        p = self.text.split(None, 1)
        self.op = p[0]
        ops = split_ops(p[1]) if len(p) > 1 else []
        self.ops = ops
        op = self.op
        self.kind = 'salu'
        rd, wr = set(), set()
        allr = [regs_of(o) for o in ops]
        if op.startswith('v_mfma'):
            self.kind = 'mfma'
            wr = allr[0]
            self.A, self.B, self.C = allr[1], allr[2], allr[3]
            rd = self.A | self.B | self.C
            self.passes = 8 if '32x32x16' in op else 4
        elif op.startswith('ds_read'):
            self.kind = 'ds'
            wr = allr[0]
            rd = allr[1]
        elif op.startswith('ds_write'):
            self.kind = 'ds'
            for r in allr:
                rd |= r
        elif op.startswith('ds_bpermute'):
            self.kind = 'ds'
            wr = allr[0]
            rd = allr[1] | allr[2]
        elif op.startswith('buffer_load') or op.startswith('global_load'):
            self.kind = 'vmem'
            if re.search(r'\blds\b', self.text):
                for r in allr:
                    rd |= r
                rd.add('m0')
                self.dma = True
            else:
                wr = allr[0]
                for r in allr[1:]:
                    rd |= r
                if 'd16' in op:
                    rd |= allr[0]
        elif op.startswith('buffer_store') or op.startswith('global_store') or op.startswith('buffer_atomic'):
            self.kind = 'vmem'
            for r in allr:
                rd |= r
            self.store_data = allr[0] if op.startswith('buffer') else allr[1]
            self.wide = op.endswith('x4') or op.endswith('x3')
        elif op.startswith('buffer_wbl2') or op.startswith('buffer_inv'):
            self.kind = 'vmem'
        elif op.startswith('v_'):
            self.kind = 'valu'
            wr = set(allr[0])
            for r in allr[1:]:
                rd |= r
            if op.startswith(('v_fmac', 'v_dot2c', 'v_writelane')):
                rd |= allr[0]
            if op.startswith('v_permlane'):
                rd |= allr[0]
                wr |= allr[1]
            if op.startswith('v_cmpx'):
                wr.add('exec')
            if op.startswith(('v_add_co', 'v_sub_co', 'v_addc_co')):
                wr |= allr[1]
        elif op.startswith(('s_load', 's_atomic', 's_memtime', 's_memrealtime')):
            self.kind = 'smem'
            if op.startswith('s_atomic'):
                for r in allr:
                    rd |= r
                if 'glc' in self.text:
                    wr = allr[0]
            else:
                wr = allr[0]
                for r in allr[1:]:
                    rd |= r
        elif op in ('s_waitcnt', 's_nop', 's_barrier', 's_sleep', 's_setprio', 's_endpgm'):
            self.kind = 'ctl'
        elif op.startswith('s_cmp') or op.startswith('s_bitcmp'):
            for r in allr:
                rd |= r
            wr = {'scc'}
        elif op.startswith('s_cbranch') or op == 's_branch':
            self.kind = 'ctl'
        else:
            wr = set(allr[0]) if allr else set()
            for r in allr[1:]:
                rd |= r
            if 'saveexec' in op:
                wr.add('exec')
        self.rd, self.wr = rd, wr

    def cost(self):
        if self.kind == 'mfma':
            return 8
        if self.op in TRANS:
            return 8
        if self.op == 's_nop':
            return 4 * (int(self.ops[0]) + 1)
        return 4


class Raw:
    def __init__(self, text, fence=False, vm0=False, states=0):
        self.text, self.fence, self.vm0, self.states = text, fence, vm0, states
        self.kind = 'raw'

    def cost(self):
        return 4 * self.states


class WaitTag:
    def __init__(self, *tags):
        self.tags = set(tags)
        self.kind = 'waittag'

    def cost(self):
        return 4


class Barrier:
    def __init__(self, ready=(), release=(), dsw=False):
        self.ready, self.release, self.dsw = list(ready), list(release), dsw
        self.kind = 'barrier'

    def cost(self):
        return 8


class Either:
    n = 0

    def __init__(self, cond_text, a, b):
        self.cond, self.a, self.b = cond_text, a, b
        self.kind = 'either'

    def cost(self):
        return 12 + sum(i.cost() for i in self.a)


def insert_waits(prog, check_lds=True):
    out = []
    vm = []
    ds = []
    sm = []
    unit = {}

    def emit_wait(vn=None, ln=None):
        parts = []
        if vn is not None:
            assert vn >= 0
            vn = min(vn, 63)
            parts.append(f'vmcnt({vn})')
            del vm[:max(0, len(vm) - vn)]
        if ln is not None:
            ln = min(ln, 15)
            parts.append(f'lgkmcnt({ln})')
            del ds[:max(0, len(ds) - ln)]
            if ln == 0:
                sm.clear()
        out.append(I('s_waitcnt ' + ' '.join(parts)))

    def need(ins):
        touch = ins.rd | ins.wr
        vn = ln = None
        for k in range(len(vm) - 1, -1, -1):
            if vm[k].wr & touch:
                vn = len(vm) - 1 - k
                break
        for k in range(len(ds) - 1, -1, -1):
            if ds[k].wr & touch:
                if ins.kind == 'ds' and not (ds[k].wr & ins.rd):
                    continue
                ln = len(ds) - 1 - k
                break
        for s in sm:
            if s.wr & touch:
                ln = 0
        return vn, ln

    def lds_track(ins):
        if not check_lds or getattr(ins, 'lds', None) is None:
            return
        mode, names = ins.lds
        for (u, content) in names:
            st = unit.setdefault(u, {'content': None, 'free': True, 'ready': False})
            if mode == 'dma':
                if st['content'] != content:
                    assert st['free'], f'DMA {content} into unit {u} still holding {st["content"]}: {ins.text}'
                    st.update(content=content, free=False, ready=False)
                else:
                    assert not st['ready'], f'DMA into ready unit {u} {content}'
            elif mode == 'read':
                assert st['content'] == content and st['ready'] and not st['free'], \
                    f'read of {content} in unit {u}: state {st}: {ins.text}'

    def process(ins):
        vn, ln = need(ins)
        if vn is not None or ln is not None:
            emit_wait(vn, ln)
        lds_track(ins)
        if ins.kind == 'vmem':
            if len(vm) >= 63:
                emit_wait(vn=62)
            vm.append(ins)
        elif ins.kind == 'ds':
            ds.append(ins)
        elif ins.kind == 'smem':
            sm.append(ins)
        elif ins.op == 's_waitcnt':
            m = re.search(r'vmcnt\((\d+)\)', ins.text)
            if m:
                del vm[:max(0, len(vm) - int(m.group(1)))]
            m = re.search(r'lgkmcnt\((\d+)\)', ins.text)
            if m:
                n = int(m.group(1))
                del ds[:max(0, len(ds) - n)]
                if n == 0:
                    sm.clear()

    for it in prog:
        if it.kind == 'raw':
            out.append(it)
        elif it.kind == 'waittag':
            for k in range(len(vm) - 1, -1, -1):
                if vm[k].tag in it.tags:
                    emit_wait(vn=len(vm) - 1 - k)
                    break
        elif it.kind == 'barrier':
            vn = ln = None
            rdy = set(it.ready)
            for k in range(len(vm) - 1, -1, -1):
                l = getattr(vm[k], 'lds', None)
                if l and l[0] == 'dma' and any(x in rdy for x in l[1]):
                    vn = len(vm) - 1 - k
                    break
            rel = set(it.release)
            for k in range(len(ds) - 1, -1, -1):
                l = getattr(ds[k], 'lds', None)
                if it.dsw or (l and any(x in rel for x in l[1])):
                    ln = len(ds) - 1 - k
                    break
            if vn is not None or ln is not None:
                emit_wait(vn, ln)
            out.append(I('s_barrier'))
            if check_lds:
                for (u, content) in it.ready:
                    st = unit[u]
                    assert st['content'] == content, (u, content, st)
                    st['ready'] = True
                for (u, content) in it.release:
                    st = unit[u]
                    assert st['content'] == content, (u, content, st)
                    st['free'] = True
        elif it.kind == 'either':
            vn = ln = None
            for ins in it.a:
                a, b = need(ins)
                if a is not None:
                    vn = a if vn is None else min(vn, a)
                if b is not None:
                    ln = b if ln is None else min(ln, b)
            c = I(it.cond)
            a, b = need(c)
            if b is not None:
                ln = 0
            if vn is not None or ln is not None:
                emit_wait(vn, ln)
            while len(vm) + len(it.a) > 63:
                emit_wait(vn=63 - len(it.a))
            for ins in it.a:
                assert ins.kind in ('vmem', 'mfma')
                if ins.kind == 'vmem':
                    vm.append(ins)
            out.append(it)
        else:
            process(it)
            out.append(it)
    return out


def is_v(r):
    return r[0] in 'va' and r[1:].isdigit()


def is_s(r):
    return (r[0] == 's' and r[1:].isdigit()) or r == 'vcc'


def hazard_need(p, c):
    n = 0
    if p.kind == 'valu':
        vw = {r for r in p.wr if is_v(r)}
        sw = {r for r in p.wr if is_s(r)}
        if c.kind == 'mfma' and vw & c.rd:
            n = max(n, 2)
        if c.kind == 'valu':
            if c.op.startswith(('v_readfirstlane', 'v_readlane')) and vw & c.rd:
                n = max(n, 1)
            if (c.op.startswith('v_permlane') or 'row_' in c.text or 'quad_perm' in c.text) and vw & (c.rd | c.wr):
                n = max(n, 2)
            if sw & c.rd:
                n = max(n, 4 if c.op.startswith(('v_readlane', 'v_writelane')) else 2)
            if p.op in TRANS and vw & c.rd:
                n = max(n, 1)
            if ('sdwa' in p.op or 'op_sel' in p.text) and vw & (c.rd | c.wr):
                n = max(n, 1)
        if c.kind == 'vmem' and sw & c.rd:
            n = max(n, 5)
        if c.kind in ('salu', 'smem', 'ctl') and (sw & c.rd or ('vcc' in sw and 'vcc' in c.op)):
            n = max(n, 4)
        if p.op in TRANS and c.kind in ('ds', 'vmem') and vw & c.rd:
            n = max(n, 1)
        if 'exec' in p.wr:
            n = max(n, 5)
    if p.kind == 'mfma':
        big = p.passes == 8
        if c.kind == 'mfma':
            if p.wr & (c.A | c.B):
                n = max(n, 12 if big else 8)
            if p.wr & c.C and not (p.wr == c.C and p.passes == c.passes):
                n = max(n, 10 if big else 6)
            if p.wr & c.wr and not (p.wr & c.C):
                n = max(n, 12 if big else 8)
        elif c.kind in ('valu', 'ds', 'vmem'):
            if p.wr & (c.rd | c.wr):
                n = max(n, 12 if big else 8)
            if p.C & c.wr:
                n = max(n, 7 if big else 3)
    if p.kind == 'vmem' and getattr(p, 'wide', False):
        if p.store_data & c.wr:
            n = max(n, 2)
    if p.kind == 'salu' and 'm0' in p.wr and getattr(c, 'dma', False):
        n = max(n, 1)
    return n


def states(ins):
    if ins.op == 's_nop':
        return int(ins.ops[0]) + 1
    return 1


def insert_nops(prog):
    out = []
    hist = []

    def pad_for(ins):
        need = 0
        for p, d in hist:
            k = hazard_need(p, ins) - d
            need = max(need, k)
        return need

    def advance(n):
        for k in range(len(hist)):
            hist[k] = (hist[k][0], hist[k][1] + n)
        while hist and hist[0][1] > 20:
            hist.pop(0)

    def push(ins):
        advance(states(ins))
        hist.append((ins, 0))

    for it in prog:
        if it.kind == 'raw':
            if it.fence:
                worst = 0
                for p, d in hist:
                    w = 12 if p.kind == 'mfma' else 5 if p.kind == 'valu' and any(is_s(r) or r == 'exec' for r in p.wr) \
                        else 2 if p.kind in ('valu', 'vmem') else 1 if 'm0' in p.wr else 0
                    worst = max(worst, w - d)
                if worst > 0:
                    out.append(I(f's_nop {worst - 1}'))
                hist.clear()
            else:
                advance(it.states)
            out.append(it)
        elif it.kind == 'either':
            c = I(it.cond)
            k = pad_for(c)
            if k > 0:
                out.append(I(f's_nop {k - 1}'))
                advance(k)
            advance(2)
            k = max(pad_for(x) for x in it.a)
            if k > 0:
                out.append(I(f's_nop {k - 1}'))
                advance(k)
            out.append(it)
            for x in it.a:
                push(x)
        else:
            k = pad_for(it)
            if k > 0:
                out.append(I(f's_nop {k - 1}'))
                advance(k)
            out.append(it)
            push(it)
    return out


def render(prog):
    lines = []
    for it in prog:
        if it.kind == 'either':
            Either.n += 1
            n = Either.n
            lines.append('    ' + it.cond)
            lines.append(f'    s_cbranch_scc0 L_alt{n}b')
            for x in it.a:
                lines.append('    ' + x.text)
            lines.append(f'    s_branch L_alt{n}e')
            lines.append(f'L_alt{n}b:')
            for x in it.b:
                lines.append('    ' + x.text)
            lines.append(f'L_alt{n}e:')
        elif it.kind == 'raw':
            lines.append(it.text)
        else:
            t = '    ' + it.text
            if it.note:
                t += '    ; ' + it.note
            lines.append(t)
    return '\n'.join(lines)


class Alloc:
    def __init__(self, prefix, n, start=0):
        self.p, self.n = prefix, n
        self.free = [True] * n
        for i in range(start):
            self.free[i] = False
        self.names = {}
        self.hi = start

    def get(self, name, cnt=1, align=1):
        for s in range(0, self.n - cnt + 1):
            if s % align == 0 and all(self.free[s:s + cnt]):
                for k in range(s, s + cnt):
                    self.free[k] = False
                assert name not in self.names, name
                self.names[name] = (s, cnt)
                self.hi = max(self.hi, s + cnt)
                return R(self.p, s, cnt)
        raise RuntimeError(f'out of {self.p} registers for {name} ({cnt}); used {self.names}')

    def rel(self, *names):
        for name in names:
            s, cnt = self.names.pop(name)
            for k in range(s, s + cnt):
                self.free[k] = True


class R:
    def __init__(self, p, s, n):
        self.p, self.s, self.n = p, s, n

    def __getitem__(self, i):
        if isinstance(i, slice):
            a = i.start or 0
            b = i.stop if i.stop is not None else self.n
            assert 0 <= a < b <= self.n, (a, b, self.n)
            return R(self.p, self.s + a, b - a)
        assert 0 <= i < self.n, (i, self.n)
        return R(self.p, self.s + i, 1)

    def __str__(self):
        if self.n == 1:
            return f'{self.p}{self.s}'
        return f'{self.p}[{self.s}:{self.s + self.n - 1}]'

    __repr__ = __str__

    def __format__(self, spec):
        return str(self)
```

```python
import struct
import sys
from asmlib import *

NAME = 'gated_mix__ssm_conv_s5__dense_activation_relu__prompt'

WS_FIN = 0
WS_HFL = 57344
WS_PFL = 65536
WS_IDS = 79872
WS_CLR_END = 81920
WS_STAMP = 81920
WS_HID = 0x30000
WS_PART = WS_HID + 224 * 49152
WS_END = WS_PART + 224 * 16384
NCLR = WS_CLR_END // 4096

U = 8192
SCR = 19 * U
FX = SCR
GW = SCR + 3840
GT = SCR + 4864


def f32(x):
    return '0x%08x' % struct.unpack('<I', struct.pack('<f', x))[0]


class AddrReg:
    def __init__(self, reg):
        self.reg, self.base = reg, 0

    def at(self, off, out, span=0):
        d = off - self.base
        if d < 0 or d + span > 65535:
            nb = (off // U) * U
            delta = nb - self.base
            out.append(I(f'v_add_u32 {self.reg}, {delta & 0xffffffff:#x}, {self.reg}'))
            self.base = nb
            d = off - nb
        return f'{self.reg} offset:{d}'


class Gen:
    def __init__(self, **kw):
        self.o = dict(stamps=False, lead=8, lag=9, ldx='', ldw='', hst='nt', force_slow=False, pf=2,
                      side_fa=7, side_fb=9, alead=10, outst='', beat=66)
        self.o.update(kw)
        self.p = []
        self.tail = []
        self.t = 0
        self.mfree = 0
        self.dq = []
        self.dma_n = 0
        self.next_dma = 0
        self.unit = {}
        self.reads = {}
        self.nstamp = 0
        self.nlab = 0

    def e(self, x, **kw):
        if isinstance(x, str):
            x = I(x, **kw)
        if x.kind == 'mfma' or (x.kind == 'either' and x.a[0].kind == 'mfma'):
            self.t = max(self.t, self.mfree)
            self.mfree = self.t + 4 * (x.passes if x.kind == 'mfma' else 8)
        self.t += x.cost()
        if x.kind == 'vmem':
            self.dma_n += 1
        if x.kind == 'either' and x.a[0].kind == 'vmem':
            self.dma_n += len(x.a)
            self.next_dma = max(self.next_dma, self.t - 200) + 100 * len(x.a)
        if x.kind == 'ds' and x.lds and x.lds[0] == 'read':
            for k in x.lds[1]:
                st = self.unit.get(k[0])
                if st is None or st['content'] != k[1] or not st['ready']:
                    self.barrier(must=k)
                self.reads[k] -= 1
        if x.kind == 'barrier' and not getattr(x, 'done', False):
            return self.barrier(dsw=x.dsw)
        self.p.append(x)

    def barrier(self, must=None, dsw=False):
        ready, release = [], []
        if must is not None:
            while not (must[0] in self.unit and self.unit[must[0]]['content'] == must[1] and self.unit[must[0]]['left'] == 0):
                assert self.dma(force=True), f'cannot issue DMA for {must}'
        lim = self.dma_n - self.o['lag']
        if must is not None:
            lim = max(lim, self.unit[must[0]]['at'])
        for u, st in self.unit.items():
            k = (u, st['content'])
            if not st['ready'] and st['left'] == 0 and st['at'] <= lim:
                st['ready'] = True
                ready.append(k)
            elif st['ready'] and not st['free'] and self.reads[k] == 0:
                st['free'] = True
                release.append(k)
        b = Barrier(ready, release, dsw)
        b.done = True
        self.t += 8
        self.p.append(b)

    def add_dma(self, m0, loads, keys, nreads):
        for k, n in zip(keys, nreads):
            self.reads[k] = n
        for i, l in enumerate(loads):
            self.dq.append(dict(m0=m0 if i == 0 else None, text=l, keys=keys, first=i == 0, n=len(loads)))

    def dma(self, force=False, allow_barrier=True):
        if not self.dq:
            return False
        d = self.dq[0]
        if d['first']:
            for (u, c) in d['keys']:
                st = self.unit.get(u)
                if st is not None and not st['free']:
                    if allow_barrier and all(self.unit.get(uu) is None or self.unit[uu]['free'] or
                                             (self.unit[uu]['ready'] and self.reads[(uu, self.unit[uu]['content'])] == 0)
                                             for (uu, _) in d['keys']):
                        self.barrier()
                        break
                    return False
            for (u, c) in d['keys']:
                self.unit[u] = dict(content=c, left=d['n'], at=0, ready=False, free=False)
        self.dq.pop(0)
        if d['m0']:
            self.e(d['m0'])
        self.e(I(d['text'], lds=('dma', d['keys'])))
        for (u, c) in d['keys']:
            self.unit[u]['left'] -= 1
            self.unit[u]['at'] = self.dma_n
        return True

    def tick(self):
        if self.dq and self.t >= self.next_dma:
            if self.dma():
                self.next_dma = max(self.next_dma, self.t - 200) + self.o['beat']

    def run_side(self, side, n=None):
        k = 0
        while side and (n is None or k < n):
            x = side.pop(0)
            if callable(x):
                x()
            else:
                self.e(x)
            k += 1
            if n is None:
                self.tick()

    def stamp(self):
        if self.o['stamps']:
            assert self.nstamp < 8
            self.e(f's_memrealtime {self.sST[2 * self.nstamp:2 * self.nstamp + 2]}')
            self.nstamp += 1

    def spoll(self, dst, base, off, test, name):
        self.e('s_waitcnt lgkmcnt(0)')
        for x in test:
            self.e(x)
        self.p.append(Raw(f'    s_cbranch_scc0 L_retry_{name}\nL_ok_{name}:', states=1))
        loads = [f'    s_load_dword {d}, {base}, {o} glc' for d, o in zip(dst, off)]
        self.tail.append('\n'.join([
            f'L_retry_{name}:',
            f'    s_mov_b32 {self.sCnt}, 0x40000',
            f'L_spin_{name}:'] + loads + [
            '    s_waitcnt lgkmcnt(0)'] + ['    ' + x for x in test] + [
            f'    s_cbranch_scc1 L_ok_{name}',
            f'    s_sub_u32 {self.sCnt}, {self.sCnt}, 1',
            f'    s_cbranch_scc0 L_spin_{name}',
            f'    s_branch L_ok_{name}']))

    def vpoll(self, load, test, name):
        for x in test:
            self.e(x)
        self.e('s_nop 3')
        self.p.append(Raw(f'    s_cbranch_vccnz L_retry_{name}\nL_ok_{name}:', states=1))
        self.tail.append('\n'.join(
            [f'L_retry_{name}:', f'    s_mov_b32 {self.sCnt}, 0x40000', f'L_spin_{name}:'] + ['    ' + x for x in load] +
            ['    s_waitcnt vmcnt(0)'] + ['    ' + x for x in test] +
            ['    s_nop 3', f'    s_cbranch_vccz L_ok_{name}',
             f'    s_sub_u32 {self.sCnt}, {self.sCnt}, 1', f'    s_cbranch_scc0 L_spin_{name}', f'    s_branch L_ok_{name}']))

    def build(self):
        o = self.o
        e = self.e
        V = Alloc('v', 256, start=1)
        A = Alloc('a', 256)
        S = Alloc('s', 102, start=4)
        sK = S.get('K', 32, 4)
        rX = S.get('rX', 4, 4); rB = S.get('rB', 4, 4); rW1 = S.get('rW1', 4, 4)
        sCK = S.get('CK', 7); sW1 = S.get('W1o', 7)
        sw = S.get('w'); srb = S.get('rb'); sct = S.get('ct'); shf = S.get('hf'); scg = S.get('cg')
        stl = S.get('tl'); srt = S.get('rt'); skq = S.get('kq'); steam = S.get('team'); srbl = S.get('rbl')
        sM4 = S.get('M4'); sM2 = S.get('M2'); sMl = S.get('Ml')
        st0 = S.get('t0'); st1 = S.get('t1'); st2 = S.get('t2'); self.sCnt = S.get('cnt')
        sfast = S.get('fast'); sPoll = S.get('poll', 2)
        if o['stamps']:
            self.sST = S.get('ST', 16, 2)
        px, pLr, pLi, pBr, pBi, pCr, pCi, pdt, pD, _, pw1, pw2, pgw, pout, pdbg, pws = [sK[2 * i:2 * i + 2] for i in range(16)]
        accS = V.get('accS', 32, 4); accFa = V.get('accFa', 32, 4); accFb = V.get('accFb', 32, 4)
        accG = V.get('accG', 4, 4); hidL = V.get('hidL', 48, 4); T = V.get('T', 32, 4)
        vl = V.get('lane'); vc = V.get('c'); vh = V.get('h')
        oX = V.get('oX', 4); oB = V.get('oB', 2); oW1 = V.get('oW1', 4); oW2 = V.get('oW2', 4); oC = V.get('oC', 4)
        aXr = V.get('aX', 4); aBr = V.get('aB', 4); aGW = V.get('aGW')
        aT1r = V.get('aT1', 2); aT2r = V.get('aT2', 2); aCr = V.get('aC', 2)
        aFX = V.get('aFX'); aGw = V.get('aGw'); aGr = V.get('aGr'); aTw = V.get('aTw'); aTr = V.get('aTr')
        lam = V.get('lam', 13)
        l1r, l1i, n1i, l16r, l16i, l128r, l128i, l1kr, l1ki, lsr, lsi, cr, ci = [lam[i] for i in range(13)]
        vP = V.get('P', 2, 2); vf = V.get('f', 4, 2); omg = V.get('omg'); ge = V.get('ge', 4)
        oH = V.get('oH', 3); oFl = V.get('oFl'); oFs = V.get('oFs'); vQ = V.get('Q'); vZ = V.get('Z')
        aX = A.get('X', 112, 4)
        PF = o['pf']
        ring = A.get('ring', 12 * (PF + 1), 4)

        self.p.append(Raw('    s_cmp_ge_u32 s2, 256\n    s_cbranch_scc1 L_end', states=2))
        e(f's_load_dwordx16 {sK[0:16]}, s[0:1], 0')
        e(f's_load_dwordx16 {sK[16:32]}, s[0:1], 64')
        self.stamp()
        e(f's_getpc_b64 {sPoll}')
        e(f'v_lshlrev_b32 {T[0]}, 7, v0')
        e(f'v_min_u32 {T[0]}, L_end-L_pc0, {T[0]}')
        self.p.insert(len(self.p) - 2, Raw('L_pc0:'))
        e(f'global_load_dword {T[1]}, {T[0]}, {sPoll}')
        e(f'v_lshrrev_b32 {T[2]}, 6, v0')
        e(f'v_and_b32 {vl}, 63, v0')
        e(f'v_readfirstlane_b32 {sw}, {T[2]}')
        self.p.append(Raw('    s_cmp_lt_u32 s2, 32\n    s_cbranch_scc1 L_helper', states=2))
        e(f's_lshr_b32 {st0}, s2, 3')
        e(f's_sub_u32 {st0}, {st0}, 4')
        e(f's_mul_i32 {srbl}, {st0}, 37')
        e(f's_lshr_b32 {srbl}, {srbl}, 8')
        e(f's_mul_i32 {st1}, {srbl}, 7')
        e(f's_sub_u32 {sct}, {st0}, {st1}')
        e(f's_and_b32 {shf}, s2, 1')
        e(f's_bfe_u32 {st0}, s2, 0x20001')
        e(f's_lshl_b32 {srb}, {st0}, 2')
        e(f's_add_u32 {srb}, {srb}, {srbl}')
        e(f's_mul_i32 {scg}, {shf}, 7')
        e(f's_add_u32 {scg}, {scg}, {sct}')
        e(f's_and_b32 {srt}, {sw}, 1')
        e(f's_lshr_b32 {skq}, {sw}, 1')
        e(f's_xor_b32 {st0}, {shf}, {skq}')
        e(f's_xor_b32 {st0}, {st0}, 1')
        e(f's_lshl_b32 {stl}, {st0}, 1')
        e(f's_add_u32 {stl}, {stl}, {srt}')
        e(f's_lshl_b32 {sM4}, {sw}, 12')
        e(f's_lshl_b32 {sM2}, {sw}, 11')
        e(f's_lshl_b32 {st0}, {srbl}, 1')
        e(f's_add_u32 {st0}, {st0}, {sct}')
        for c in range(7):
            if c:
                e(f's_add_u32 {st0}, {st0}, 1')
            e(f's_sub_u32 {st1}, {st0}, 7')
            e(f's_cselect_b32 {st0}, {st0}, {st1}')
            e(f's_lshl_b32 {sCK[c]}, {st0}, 7')
        p7, l3, l4 = T[3], T[4], T[5]
        e(f'v_and_b32 {p7}, 7, {vl}')
        e(f'v_lshrrev_b32 {l3}, 3, {vl}')
        e(f'v_lshrrev_b32 {l4}, 4, {vl}')
        e(f'v_lshrrev_b32 {vh}, 5, {vl}')
        e(f'v_and_b32 {vc}, 31, {vl}')
        e(f'v_xor_b32 {T[6]}, {p7}, {l4}')
        e(f'v_lshlrev_b32 {T[6]}, 4, {T[6]}')
        e(f'v_xor_b32 {T[7]}, 64, {T[6]}')
        e(f's_lshl_b32 {st0}, {srb}, 2')
        e(f's_add_u32 {st0}, {st0}, {stl}')
        e(f's_lshl_b32 {st0}, {st0}, 5')
        e(f'v_and_b32 {T[8]}, 3, {l3}')
        e(f'v_lshl_add_u32 {T[8]}, {vh}, 4, {T[8]}')
        e(f'v_add_u32 {T[8]}, {st0}, {T[8]}')
        e(f'v_mul_u32_u24 {T[8]}, 896, {T[8]}')
        for i in range(4):
            e(f'v_add_u32 {oX[i]}, {T[8]}, {T[6 + (i & 1)]}')
            if i:
                e(f'v_add_u32 {oX[i]}, {i * (4 * 896 - 1024)}, {oX[i]}')
        e(f's_lshl_b32 {st0}, {scg}, 1')
        e(f's_add_u32 {st0}, {st0}, {srt}')
        e(f's_lshl_b32 {st0}, {st0}, 4')
        e(f'v_add_u32 {T[8]}, {st0}, {l3}')
        e(f'v_mul_u32_u24 {T[8]}, 896, {T[8]}')
        e(f'v_add_u32 {oB[0]}, {T[8]}, {T[6]}')
        e(f'v_add_u32 {oB[1]}, {T[8]}, {T[7]}')
        e(f'v_add_u32 {oB[1]}, {8 * 896 - 1024}, {oB[1]}')
        e(f's_lshl_b32 {st0}, {scg}, 6')
        e(f'v_lshl_add_u32 {T[9]}, {vc}, 1, {st0}')
        e(f'v_lshl_add_u32 {T[10]}, {vl}, 4, {sCK[0]}')
        e(f'v_subrev_u32 {T[11]}, 896, {T[10]}')
        e(f'v_min_u32 {T[10]}, {T[10]}, {T[11]}')
        e('s_waitcnt lgkmcnt(0)')
        def srd(r, ptr, size):
            e(f's_mov_b32 {r[0]}, {ptr[0]}')
            e(f's_mov_b32 {r[1]}, {ptr[1]}')
            e(f's_mov_b32 {r[2]}, {size}')
            e(f's_mov_b32 {r[3]}, 0x20000')
        srd(rX, px, 1835008)
        e(f's_cmp_eq_u32 {skq}, 0')
        e(f's_cselect_b32 {rB[0]}, {pBr[0]}, {pBi[0]}')
        e(f's_cselect_b32 {rB[1]}, {pBr[1]}, {pBi[1]}')
        e(f's_mov_b32 {rB[2]}, 401408')
        e(f's_mov_b32 {rB[3]}, 0x20000')

        ux = [0, 3, 6, 9, 12, 15, 0]
        ub = [2, 5, 8, 11, 14, 17, 18]
        for c in range(7):
            self.add_dma(f's_add_u32 m0, {sM4}, {ux[c] * U}',
                         [f'buffer_load_dwordx4 {oX[i]}, {rX}, {sCK[c]} offen offset:{1024 * i} {o["ldx"]} lds' for i in range(4)],
                         [(ux[c], f'X{c}'), (ux[c] + 1, f'X{c}')], [4, 4])
            self.add_dma(f's_add_u32 m0, {sM2}, {ub[c] * U}',
                         [f'buffer_load_dwordx4 {oB[i]}, {rB}, {sCK[c]} offen offset:{1024 * i} {o["ldw"]} lds' for i in range(2)],
                         [(ub[c], f'B{c}')], [8])
        for _ in range(6):
            self.dma()
        prm = T[12:15]
        e(f'global_load_ushort {prm[0]}, {T[9]}, {pLr}')
        e(f'global_load_ushort {prm[1]}, {T[9]}, {pLi}')
        e(f'global_load_ushort {prm[2]}, {T[9]}, {pdt}')
        e(f'global_load_dwordx4 {T[16:20]}, {T[10]}, {pgw}')
        for _ in range(4):
            self.dma()
        self.stamp()

        srd(rW1, pw1, 1605632)
        for c in range(7):
            e(f's_mul_i32 {sW1[c]}, {sCK[c]}, 1792')
        for r in range(4):
            e(f'v_mov_b32 {T[20 + r]}, 0')
        e(f's_lshl_b32 {st0}, {srt}, 10')
        e(f's_add_u32 {st0}, {st0}, {FX}')
        e(f'v_lshl_add_u32 {T[24]}, {vl}, 4, {st0}')
        e(f'ds_write_b128 {T[24]}, {T[20:24]}')
        e(f'v_bfe_u32 {T[25]}, {vl}, 1, 3')
        e(f'v_xor_b32 {T[25]}, {T[25]}, {vh}')
        e(f'v_lshlrev_b32 {T[25]}, 4, {T[25]}')
        e(f'v_lshl_add_u32 {aBr[0]}, {vc}, 7, {T[25]}')
        for s in range(1, 4):
            e(f'v_xor_b32 {aBr[s]}, {32 * s}, {aBr[0]}')
        for s in range(4):
            e(f'v_add_u32 {aXr[s]}, {sM4}, {aBr[s]}')
        aXa = [AddrReg(aXr[s]) for s in range(4)]
        aBa = [AddrReg(aBr[s]) for s in range(4)]
        e(f'v_lshrrev_b32 {T[25]}, 2, {vl}')
        e(f'v_xor_b32 {T[25]}, {T[25]}, {l4}')
        e(f'v_and_b32 {T[25]}, 1, {T[25]}')
        e(f'v_lshlrev_b32 {T[26]}, 4, {vh}')
        e(f'v_add_u32 {T[26]}, {GW}, {T[26]}')
        e(f'v_mov_b32 {aGW}, {FX}')
        e(f'v_cmp_eq_u32 vcc, 0, {T[25]}')
        e(f'v_cndmask_b32 {aGW}, {aGW}, {T[26]}, vcc')
        e(f'v_lshlrev_b32 {T[27]}, 4, {vl}')
        e(f'v_add_u32 {T[28]}, {GW}, {T[27]}')
        e(f'v_and_b32 {T[25]}, 1, {l4}')
        e(f'v_lshlrev_b32 {T[25]}, 2, {T[25]}')
        e(f'v_xor_b32 {T[25]}, {T[25]}, {p7}')
        e(f'v_lshlrev_b32 {T[25]}, 4, {T[25]}')
        e(f's_lshl_b32 {st0}, {sw}, 4')
        e(f'v_add_u32 {T[26]}, {st0}, {l3}')
        e(f'v_mul_u32_u24 {T[26]}, 3584, {T[26]}')
        e(f's_lshl_b32 {st0}, {scg}, 8')
        e(f'v_add3_u32 {oW1[0]}, {T[26]}, {T[25]}, {st0}')
        e(f'v_add_u32 {oW1[1]}, {8 * 3584 - 1024}, {oW1[0]}')
        e(f'v_add_u32 {oW1[2]}, 128, {oW1[0]}')
        e(f'v_add_u32 {oW1[3]}, 128, {oW1[1]}')
        e(f's_lshl_b32 {st0}, {srt}, 5')
        e(f'v_add_u32 {T[26]}, {st0}, {l3}')
        e(f'v_mul_u32_u24 {T[26]}, 896, {T[26]}')
        e(f's_lshl_b32 {st0}, {sct}, 7')
        e(f'v_add3_u32 {oW2[0]}, {T[26]}, {T[25]}, {st0}')
        for i in range(1, 4):
            e(f'v_add_u32 {oW2[i]}, {i * (8 * 896 - 1024)}, {oW2[0]}')
        e(f'v_and_b32 {T[25]}, 3, {vl}')
        e(f'v_xor_b32 {T[25]}, {T[25]}, {l4}')
        e(f'v_lshlrev_b32 {T[25]}, 4, {T[25]}')
        e(f's_lshl_b32 {st0}, {sct}, 6')
        e(f'v_lshrrev_b32 {T[26]}, 2, {vl}')
        e(f'v_add_u32 {T[26]}, {st0}, {T[26]}')
        e(f'v_mul_u32_u24 {T[26]}, 896, {T[26]}')
        e(f'v_add_u32 {oC[0]}, {T[26]}, {T[25]}')
        for i in range(1, 4):
            e(f'v_add_u32 {oC[i]}, {i * (16 * 896 - 1024)}, {oC[0]}')
        e(f'ds_write_b128 {T[28]}, {T[16:20]}')

        for half in range(2):
            for c in range(7):
                u = 2 + 7 * half + c
                self.add_dma(f's_add_u32 m0, {sM2}, {u * U}',
                             [f'buffer_load_dwordx4 {oW1[2 * half + i]}, {rW1}, {sW1[c]} offen offset:{1024 * i} {o["ldw"]} lds'
                              for i in range(2)], [(u, f'W1{half}{c}')], [16])

        side = []
        a = side.append
        Lr, Li, ld = prm[0], prm[1], prm[2]
        t0, t1, t2, t3, a2, rv = T[16], T[17], T[18], T[19], T[20], T[21]
        L2E = 1.4426950408889634
        l2e_hi = struct.unpack('<f', struct.pack('<f', L2E))[0]
        a(f'v_lshlrev_b32 {Lr}, 16, {Lr}')
        a(f'v_lshlrev_b32 {Li}, 16, {Li}')
        a(f'v_lshlrev_b32 {ld}, 16, {ld}')
        a(f's_mov_b32 {st2}, {f32(L2E)}')
        a(f'v_mul_f32 {t0}, {st2}, {ld}')
        a(f'v_fma_f32 {t1}, {ld}, {st2}, -{t0}')
        a(f'v_fmac_f32 {t1}, {f32(L2E - l2e_hi)}, {ld}')
        a(f'v_exp_f32 {t0}, {t0}')
        a(f'v_mul_f32 {t1}, {f32(0.6931471805599453)}, {t1}')
        a(f'v_fmac_f32 {t0}, {t0}, {t1}')
        a(f'v_cvt_pk_bf16_f32 {t0}, {t0}, {t0}')
        a(f'v_lshlrev_b32 {t0}, 16, {t0}')
        a(f'v_mul_f32 {a2}, {t0}, {Lr}')
        a(f'v_mul_f32 {rv}, {t0}, {Li}')
        a(f'v_mul_f32 {a2}, {st2}, {a2}')
        a(f'v_mul_f32 {rv}, 0.15915494, {rv}')
        a(f's_lshl_b32 {st2}, {stl}, 1')
        a(f'v_add_u32 {T[22]}, {st2}, {vh}')
        a(f'v_lshlrev_b32 {t3}, 3, {vc}')
        a(f'v_lshl_add_u32 {aFX}, {T[22]}, 8, {t3}')
        a(f'v_add_u32 {aFX}, {FX}, {aFX}')
        a(f's_sub_u32 {st2}, 15, {srb}')
        a(f's_lshl_b32 {st2}, {st2}, 8')
        a(f'v_add_u32 {t3}, {st2}, {t3}')
        a(f'v_lshl_add_u32 {oFl}, {vh}, 11, {t3}')
        a(f'v_mov_b32 {oFs}, 0x10000')
        a(f'v_cmp_eq_u32 vcc, 7, {T[22]}')
        a(f'v_cndmask_b32 {oFs}, {oFs}, {t3}, vcc')
        a(f'v_lshlrev_b32 {T[22]}, 4, {T[22]}')
        a(f'v_cvt_f32_u32 {T[22]}, {T[22]}')
        for (n, dr, di) in ((None, l1r, l1i), (f32(16.0), l16r, l16i), (f32(128.0), l128r, l128i),
                            (f32(1024.0), l1kr, l1ki), (T[22], lsr, lsi)):
            if n is None:
                a(f'v_exp_f32 {t0}, {a2}')
                a(f'v_rndne_f32 {t2}, {rv}')
                a(f'v_sub_f32 {t1}, {rv}, {t2}')
            else:
                a(f'v_mul_f32 {t0}, {n}, {a2}')
                a(f'v_mul_f32 {t1}, {n}, {rv}')
                a(f'v_exp_f32 {t0}, {t0}')
                a(f'v_rndne_f32 {t2}, {t1}')
                a(f'v_sub_f32 {t1}, {t1}, {t2}')
            a(f'v_cos_f32 {dr}, {t1}')
            a(f'v_sin_f32 {di}, {t1}')
            a(f'v_mul_f32 {dr}, {t0}, {dr}')
            a(f'v_mul_f32 {di}, {t0}, {di}')
        a(f'v_sub_f32 {n1i}, 0, {l1i}')
        a(f'v_mul_f32 {t0}, {Lr}, {Lr}')
        a(f'v_fmac_f32 {t0}, {Li}, {Li}')
        a(f'v_rcp_f32 {t0}, {t0}')
        a(f'v_add_f32 {t1}, -1.0, {l1r}')
        a(f'v_add_f32 {t0}, {t0}, {t0}')
        a(f'v_mul_f32 {cr}, {t1}, {Lr}')
        a(f'v_fmac_f32 {cr}, {l1i}, {Li}')
        a(f'v_mul_f32 {ci}, {l1i}, {Lr}')
        a(f'v_fma_f32 {ci}, -{t1}, {Li}, {ci}')
        a(f'v_mul_f32 {cr}, {t0}, {cr}')
        a(f'v_mul_f32 {ci}, {t0}, {ci}')
        r_, cc_, g1_ = T[23], T[24], T[25]
        a(f'v_bfe_u32 {r_}, {vl}, 2, 2')
        a(f'v_and_b32 {cc_}, 3, {vl}')
        a(f'v_bfe_u32 {g1_}, {vl}, 4, 1')
        a(f'v_lshrrev_b32 {t0}, 1, {r_}')
        a(f'v_lshlrev_b32 {t0}, 6, {t0}')
        a(f'v_lshl_add_u32 {t0}, {g1_}, 5, {t0}')
        a(f'v_lshl_add_u32 {t0}, {cc_}, 3, {t0}')
        a(f'v_lshl_add_u32 {t0}, {r_}, 7, {t0}')
        a(f'v_lshl_add_u32 {aT1r[0]}, {vh}, 10, {t0}')
        a(f'v_xor_b32 {aT1r[1]}, 64, {aT1r[0]}')
        a(f'v_lshl_add_u32 {aT2r[0]}, {vh}, 9, {t0}')
        a(f'v_xor_b32 {aT2r[1]}, 64, {aT2r[0]}')
        a(f'v_xor_b32 {t0}, {r_}, {vh}')
        a(f'v_lshlrev_b32 {t0}, 4, {t0}')
        a(f'v_lshl_add_u32 {aCr[0]}, {vc}, 6, {t0}')
        a(f'v_xor_b32 {aCr[1]}, 32, {aCr[0]}')
        a(f's_add_u32 {st2}, {sM2}, {SCR}')
        a(f'v_lshlrev_b32 {t0}, 5, {vh}')
        a(f'v_lshl_add_u32 {t0}, {vc}, 6, {t0}')
        a(f'v_add_u32 {aTw}, {st2}, {t0}')
        a(f'v_and_b32 {t0}, 1, {cc_}')
        a(f'v_lshlrev_b32 {t0}, 5, {t0}')
        a(f'v_lshl_add_u32 {t0}, {g1_}, 4, {t0}')
        a(f'v_lshrrev_b32 {t1}, 1, {cc_}')
        a(f'v_lshl_add_u32 {t0}, {t1}, 3, {t0}')
        a(f'v_lshl_add_u32 {t0}, {r_}, 6, {t0}')
        a(f'v_lshl_add_u32 {t0}, {vh}, 9, {t0}')
        a(f'v_add_u32 {aTr}, {st2}, {t0}')
        a(f's_lshl_b32 {st2}, {stl}, 7')
        a(f's_add_u32 {st2}, {st2}, {GT}')
        a(f'v_bfe_u32 {t0}, {vl}, 2, 1')
        a(f'v_lshl_add_u32 {t0}, {t0}, 4, {cc_}')
        a(f'v_bfe_u32 {t1}, {vl}, 3, 2')
        a(f'v_lshl_add_u32 {t0}, {t1}, 2, {t0}')
        a(f'v_lshl_add_u32 {aGw}, {t0}, 2, {st2}')
        a(f'v_lshl_add_u32 {aGr}, {vh}, 6, {st2}')
        a(f'v_lshlrev_b32 {oH[0]}, 4, {vl}')
        a(f'v_add_u32 {oH[1]}, 4096, {oH[0]}')
        a(f'v_add_u32 {oH[2]}, 8192, {oH[0]}')
        rW2 = sK[0:4]; rC = sK[4:8]; rWS = sK[12:16]; rFIN = sK[20:24]; rOUT = sK[8:12]
        a(lambda: (e(f's_cmp_eq_u32 {srt}, 0'), e(f's_cselect_b32 {rC[0]}, {pCr[0]}, {pCi[0]}'),
                   e(f's_cselect_b32 {rC[1]}, {pCr[1]}, {pCi[1]}')))
        a(f's_mov_b32 {rC[2]}, 401408'); a(f's_mov_b32 {rC[3]}, 0x20000')
        a(f's_mov_b32 {rW2[0]}, {pw2[0]}'); a(f's_mov_b32 {rW2[1]}, {pw2[1]}')
        a(f's_mov_b32 {rW2[2]}, 1605632'); a(f's_mov_b32 {rW2[3]}, 0x20000')
        a(f's_mov_b32 {rOUT[0]}, {pout[0]}'); a(f's_mov_b32 {rOUT[1]}, {pout[1]}')
        a(f's_mov_b32 {rOUT[2]}, 3670016'); a(f's_mov_b32 {rOUT[3]}, 0x20000')
        a(f's_mov_b32 {rWS[0]}, {pws[0]}'); a(f's_mov_b32 {rWS[1]}, {pws[1]}')
        a(f's_mov_b32 {rWS[2]}, {WS_END}'); a(f's_mov_b32 {rWS[3]}, 0x20000')
        a(f's_lshl_b32 {st2}, {scg}, 12')
        a(lambda: (e(f's_add_u32 {rFIN[0]}, {pws[0]}, {st2}'), e(f's_addc_u32 {rFIN[1]}, {pws[1]}, 0')))
        a(f's_mov_b32 {rFIN[2]}, 4096'); a(f's_mov_b32 {rFIN[3]}, 0x20000')
        a(f's_lshl_b32 {steam}, {srb}, 1')
        a(f's_add_u32 {steam}, {steam}, {shf}')
        a(f's_lshl_b32 {sMl}, {srt}, 12')
        a(f's_lshl_b32 {st2}, {skq}, 11')
        a(f's_add_u32 {sMl}, {sMl}, {st2}')
        side_S = side

        def s_reads(k):
            c, s = divmod(k, 4)
            rr = ring[12 * (k % (PF + 1)):12 * (k % (PF + 1)) + 12]
            out = []
            out.append(I(f'ds_read_b128 {aX[4 * k:4 * k + 4]}, {aXa[s].at(ux[c] * U, out)}',
                         lds=('read', [(ux[c], f'X{c}'), (ux[c] + 1, f'X{c}')])))
            out.append(I(f'ds_read_b128 {rr[0:4]}, {aBa[s].at(ub[c] * U, out, 4096)}', lds=('read', [(ub[c], f'B{c}')])))
            out.append(I(f'ds_read_b128 {rr[4:8]}, {aBa[s].at(ub[c] * U + 4096, out)}', lds=('read', [(ub[c], f'B{c}')])))
            out.append(I(f'ds_read_b128 {rr[8:12]}, {aGW} offset:{32 * k}'))
            return out

        def s_mfma(k):
            rr = ring[12 * (k % (PF + 1)):12 * (k % (PF + 1)) + 12]
            x = aX[4 * k:4 * k + 4]
            z = k == 0
            return [I(f'v_mfma_f32_32x32x16_bf16 {accS[0:16]}, {x}, {rr[0:4]}, {0 if z else accS[0:16]}'),
                    I(f'v_mfma_f32_32x32x16_bf16 {accS[16:32]}, {x}, {rr[4:8]}, {0 if z else accS[16:32]}'),
                    I(f'v_mfma_f32_16x16x32_bf16 {accG}, {rr[8:12]}, {x}, {0 if z else accG}')]

        base_n = self.dma_n - 10
        nside = (len(side_S) + 23) // 24
        for k in range(29):
            c, s = divmod(k, 4)
            if k < 28:
                if s == 0:
                    while self.dma_n - base_n < 6 * (c + 1) + o['lead']:
                        assert self.dma(allow_barrier=False)
                    self.barrier(must=(ub[c], f'B{c}'), dsw=(c == 0))
                    if c == 0:
                        self.stamp()
                    if c == 4:
                        rdy_load = f'global_load_dword {vQ}, {vZ}, {pdbg} sc1'
                        e(f'v_mov_b32 {vZ}, 0')
                        e(rdy_load)
                        base_n += 1
                rd = s_reads(k)
            else:
                rd = []
            mf = s_mfma(k - 1) if k else []
            for x in rd[:2] if mf else rd:
                e(x)
            if mf:
                e(mf[0])
                for x in rd[2:]:
                    e(x)
                self.dma(allow_barrier=False)
                e(mf[1])
                self.run_side(side_S, nside)
                if s & 1:
                    self.dma(allow_barrier=False)
                e(mf[2])
            if k == 25:
                self.vpoll([rdy_load], [f'v_cmp_gt_u32 vcc, {NCLR}, {vQ}'], 'ready')
        self.run_side(side_S)
        self.stamp()
        e(f's_getreg_b32 {st0}, hwreg(HW_REG_XCC_ID, 0, 3)')
        e(f's_lshl_b32 {st0}, {st0}, 2')
        e(f's_lshl_b32 {sfast}, 7, {st0}')
        e(f's_lshl_b32 s3, 1, {st0}')
        e(f's_lshl_b32 {st2}, {steam}, 6')
        e(f's_add_u32 {st2}, {st2}, {WS_IDS}')
        self.p.append(Raw(f'    s_cmp_lg_u32 {sw}, 0\n    s_cbranch_scc1 L_noid', states=2))
        e(f's_atomic_add s3, {pws}, {st2} glc')
        self.p.append(Raw('L_noid:'))

        sPr = sCK[0:3]; sW2o = sCK[3:6]; sMask = sCK[6]
        sCo = rB[0:3]; sLw2 = rB[3]
        sHs = S.get('Hs'); sHl = [S.get(f'Hl{i}') for i in range(2)]
        assert not any('X' in d['keys'][0][1] or d['keys'][0][1][0] == 'B' for d in self.dq)
        pre = []
        a = pre.append
        a(f's_mov_b32 {sMask}, 0')
        for i in range(3):
            def one(i=i):
                e(f's_mul_i32 {st0}, {skq}, 3')
                e(f's_add_u32 {st0}, {st0}, {srbl}')
                e(f's_add_u32 {st0}, {st0}, {i}')
                e(f's_sub_u32 {st2}, {st0}, 6')
                e(f's_cselect_b32 {st0}, {st0}, {st2}')
                e(f's_add_u32 {st0}, {st0}, {sct}')
                e(f's_add_u32 {st0}, {st0}, 1')
                e(f's_sub_u32 {st2}, {st0}, 7')
                e(f's_cselect_b32 {sPr[i]}, {st0}, {st2}')
                e(f's_lshl_b32 {st0}, 1, {sPr[i]}')
                e(f's_or_b32 {sMask}, {sMask}, {st0}')
                e(f's_mul_i32 {st0}, {shf}, 7')
                e(f's_add_u32 {st0}, {st0}, {sPr[i]}')
                e(f's_mul_i32 {sW2o[i]}, {st0}, {128 * 896}')
                e(f's_lshl_b32 {sCo[i]}, {st0}, 6')
                e(f's_mul_i32 {sPr[i]}, {sPr[i]}, 49152')
            a(one)
        sLc = rX[3]
        def loc():
            e(f's_lshl_b32 {st0}, {scg}, 1')
            e(f's_add_u32 {st0}, {st0}, {skq}')
            e(f's_mul_i32 {sLw2}, {st0}, {64 * 896}')
            e(f's_mul_i32 {st0}, {skq}, {32 * 896}')
            e(f's_lshl_b32 {st2}, {scg}, 6')
            e(f's_add_u32 {sHs}, {st0}, {st2}')
        a(loc)
        self.run_side(pre)
        sTmp = S.get('tmpW')
        self.add_dma(f's_add_u32 m0, {sM4}, {16 * U}',
                     [f'buffer_load_dwordx4 {oW2[i]}, {rW2}, {sLw2} offen offset:{1024 * i} {o["ldw"]} lds' for i in range(4)],
                     [(16, 'La'), (17, 'Lb')], [16, 16])
        e(f's_mov_b32 {sTmp}, {sHs}')
        self.add_dma(f's_add_u32 m0, {sMl}, {18 * U}',
                     [f'buffer_load_dwordx4 {oC[i]}, {rC}, {sTmp} offen offset:{1024 * i} {o["ldw"]} lds' for i in range(2)],
                     [(18, 'Lc')], [8])
        sW2b = [sK[18], sK[19], sK[24]]
        for i in range(3):
            e(f's_add_u32 {sW2b[i]}, {sW2o[i]}, {64 * 896}')
        for part in range(3):
            for i in range(3):
                P = 3 * part + i
                if part < 2:
                    so = (sW2o, sW2b)[part][i]
                    lds_ = [f'buffer_load_dwordx4 {oW2[j]}, {rW2}, {so} offen offset:{1024 * j} {o["ldw"]} lds' for j in range(4)]
                    nr = 32
                else:
                    lds_ = [f'buffer_load_dwordx4 {oC[j]}, {rC}, {sCo[i]} offen offset:{1024 * j} {o["ldw"]} lds' for j in range(4)]
                    nr = 16
                self.add_dma(f's_add_u32 m0, {sM4}, {2 * P * U}', lds_, [(2 * P, f'P{P}'), (2 * P + 1, f'P{P}')], [nr, nr])
        e(f's_mul_i32 {st0}, {steam}, {7 * 49152}')
        e(f's_add_u32 {st0}, {st0}, {WS_HID}')
        e(f's_mul_i32 {st2}, {sct}, 49152')
        e(f's_add_u32 {sHs}, {st0}, {st2}')
        e(f's_mul_i32 {st2}, {stl}, 12288')
        e(f's_add_u32 {sHs}, {sHs}, {st2}')
        for i in range(3):
            e(f's_add_u32 {sPr[i]}, {sPr[i]}, {st0}')
        e(f's_xor_b32 {st0}, {shf}, 1')
        e(f's_lshl_b32 {st0}, {st0}, 1')
        e(f's_add_u32 {sHl[0]}, {st0}, {srt}')
        e(f's_xor_b32 {sHl[1]}, {sHl[0]}, 2')
        self.next_dma = self.t

        def hstores(part):
            ins = lambda fl: [I(f'buffer_store_dwordx4 {hidL[16 * part + 4 * j:16 * part + 4 * j + 4]}, {oH[part]}, {rWS}, {sHs} '
                                f'offen offset:{1024 * j} {fl}', tag='hid') for j in range(4)]
            return Either(f's_cmp_eq_u32 {sfast}, 1', ins(o['hst']), ins('sc1'))

        aT1 = [AddrReg(aT1r[n]) for n in range(2)]

        def f_reads(half, k):
            c, s = divmod(k, 4)
            u = 2 + 7 * half + c
            kk = 28 * half + k
            rr = ring[8 * (kk % (PF + 1)):8 * (kk % (PF + 1)) + 8]
            out = []
            for n in range(2):
                for j in range(2):
                    out.append(I(f'ds_read_b64_tr_b16 {rr[4 * n + 2 * j:4 * n + 2 * j + 2]}, '
                                 f'{aT1[n].at(u * U + 2048 * s + 512 * j, out)}', lds=('read', [(u, f'W1{half}{c}')])))
            return out

        def f_mfma(half, k):
            kk = 28 * half + k
            rr = ring[8 * (kk % (PF + 1)):8 * (kk % (PF + 1)) + 8]
            acc = (accFa, accFb)[half]
            return [I(f'v_mfma_f32_32x32x16_bf16 {acc[16 * n:16 * n + 16]}, {rr[4 * n:4 * n + 4]}, {aX[4 * k:4 * k + 4]}, '
                      f'{0 if k == 0 else acc[16 * n:16 * n + 16]}') for n in range(2)]

        def cmadd(a, dr, di, lr, li, xr, xi, ur, ui):
            a(f'v_fma_f32 {dr}, {lr}, {xr}, {ur}')
            a(f'v_fma_f32 {di}, {lr}, {xi}, {ui}')
            a(f'v_fma_f32 {dr}, -{li}, {xi}, {dr}')
            a(f'v_fmac_f32 {di}, {li}, {xr}')

        def f_epi(a, half):
            acc = (accFa, accFb)[half]
            for q in range(0, 32, 2):
                d = hidL[16 * half + q // 2]
                a(f'v_mul_f32 {acc[q]}, {omg}, {acc[q]}')
                a(f'v_mul_f32 {acc[q + 1]}, {omg}, {acc[q + 1]}')
                a(f'v_cvt_pk_bf16_f32 {d}, {acc[q]}, {acc[q + 1]}')
                a(f'v_pk_max_i16 {d}, {d}, 0')

        ur, ui = accS[0:16], accS[16:32]
        sa = []
        a = sa.append
        cur = (ur[0], ui[0])
        for q in range(1, 16):
            d = (vf[2 * (q & 1)], vf[2 * (q & 1) + 1])
            cmadd(a, d[0], d[1], l1r, l1i, cur[0], cur[1], ur[q], ui[q])
            cur = d
        fin = vf[2:4]
        a(f'ds_write_b64 {aFX}, {fin} offset:{7 * 256}')
        z = accG[0]
        a(f'v_cvt_pk_bf16_f32 {z}, {z}, {z}')
        a(f'v_lshlrev_b32 {z}, 16, {z}')
        a(f'v_mul_f32 {z}, {f32(-L2E)}, {z}')
        a(f'v_exp_f32 {z}, {z}')
        a(f'v_add_f32 {z}, 1.0, {z}')
        a(f'v_rcp_f32 {z}, {z}')
        a(f'v_cvt_pk_bf16_f32 {z}, {z}, {z}')
        a(f'v_lshlrev_b32 {z}, 16, {z}')
        a(f'ds_write_b32 {aGw}, {z}')
        a(f'v_sub_f32 {omg}, 1.0, {z}')
        a(f'v_cvt_pk_bf16_f32 {omg}, {omg}, {omg}')
        a(f'v_lshlrev_b32 {omg}, 16, {omg}')
        a(Barrier(dsw=True))
        for m in range(7, 0, -1):
            a(f'ds_read_b64 {T[2 * m:2 * m + 2]}, {aFX} offset:{(7 - m) * 256}')
        a(f's_lshl_b32 {st2}, {shf}, 8')
        a(f's_add_u32 {st2}, {st2}, {GT}')
        a(f'v_lshrrev_b32 {T[0]}, 4, v0')
        a(f'v_lshl_add_u32 {T[0]}, {T[0]}, 2, {st2}')
        for i in range(4):
            a(f'ds_read_b32 {ge[i]}, {T[0]} offset:{64 * i}')
        for i in range(4):
            a(f'ds_read_b128 {T[16 + 4 * i:20 + 4 * i]}, {aGr} offset:{16 * i}')
        cur = (T[14], T[15])
        for m in range(6, 0, -1):
            d = (vP[0], vP[1]) if m & 1 else (vf[0], vf[1])
            cmadd(a, d[0], d[1], l16r, l16i, cur[0], cur[1], T[2 * m], T[2 * m + 1])
            cur = d
        cmadd(a, vf[0], vf[1], l16r, l16i, vP[0], vP[1], fin[0], fin[1])
        a(f'v_min_u32 {vf[0]}, -2, {vf[0]}')
        a(f'v_min_u32 {vf[1]}, -2, {vf[1]}')
        a(I(f'buffer_store_dwordx2 {vf[0:2]}, {oFs}, {rFIN}, 0 offen sc1'))
        for q in range(16):
            a(f'v_mul_f32 {T[0]}, {ci}, {ui[q]}')
            a(f'v_mul_f32 {T[1]}, {ci}, {ur[q]}')
            a(f'v_fma_f32 {ur[q]}, {cr}, {ur[q]}, -{T[0]}')
            a(f'v_fma_f32 {ui[q]}, -{cr}, {ui[q]}, -{T[1]}')

        sb = []
        a = sb.append
        a(f's_lshl_b32 {st2}, {steam}, 6')
        a(f's_add_u32 {st2}, {st2}, {WS_IDS}')
        a(f'buffer_load_dword {vQ}, {vZ}, {rWS}, {st2} offen sc1')
        f_epi(a, 0)
        floads = [f'buffer_load_dwordx2 {T[2 * m - 2:2 * m]}, {oFl}, {rFIN}, 0 offen offset:{256 * m} sc1' for m in range(8, 0, -1)]
        for x in floads:
            a(x)
        def setfast():
            e(f'v_readfirstlane_b32 {sPoll[0]}, {vQ}')
            e(f's_cmp_eq_u32 {sPoll[0]}, {sfast}')
            e(f's_cselect_b32 {sfast}, {0 if o["force_slow"] else 1}, 0')
        a(setfast)
        a(hstores(0))
        chk = [f'v_max3_u32 {vf[0]}, {T[0]}, {T[1]}, {T[2]}']
        for k in range(3, 15, 2):
            chk.append(f'v_max3_u32 {vf[0]}, {vf[0]}, {T[k]}, {T[k + 1]}')
        chk.append(f'v_max_u32 {vf[0]}, {vf[0]}, {T[15]}')
        for x in chk:
            a(x)
        def fcheck():
            e(f'v_cmp_eq_u32 vcc, -1, {vf[0]}')
            e('s_nop 3')
            self.p.append(Raw('    s_cbranch_vccnz L_retry_fin\nL_ok_fin:', states=1))
            self.tail.append('\n'.join(
                ['L_retry_fin:', f'    s_mov_b32 {self.sCnt}, 0x40000', 'L_spin_fin:'] + ['    ' + x for x in floads] +
                ['    s_waitcnt vmcnt(0)'] + ['    ' + x for x in chk] +
                [f'    v_cmp_eq_u32 vcc, -1, {vf[0]}', '    s_nop 3', '    s_cbranch_vccz L_ok_fin',
                 f'    s_sub_u32 {self.sCnt}, {self.sCnt}, 1', '    s_cbranch_scc0 L_spin_fin', '    s_branch L_ok_fin']))
        a(fcheck)
        cur = (T[14], T[15])
        for m in range(7, 0, -1):
            d = (vf[0], vf[1]) if m & 1 else (vf[2], vf[3])
            cmadd(a, d[0], d[1], l128r, l128i, cur[0], cur[1], T[2 * m - 2], T[2 * m - 1])
            cur = d
        a(f'v_mov_b32 {vf[2]}, {vf[0]}')
        a(f'v_mov_b32 {vf[3]}, {vf[1]}')
        a(f'v_permlane32_swap_b32 {vf[0]}, {vf[2]}')
        a(f'v_permlane32_swap_b32 {vf[1]}, {vf[3]}')
        cmadd(a, T[0], T[1], l1kr, l1ki, vf[2], vf[3], vf[0], vf[1])
        cmadd(a, T[2], T[3], lsr, lsi, T[0], T[1], vP[0], vP[1])
        a(f'v_mul_f32 {T[0]}, {ci}, {T[3]}')
        a(f'v_mul_f32 {T[1]}, {ci}, {T[2]}')
        a(f'v_fma_f32 {T[2]}, {cr}, {T[2]}, -{T[0]}')
        a(f'v_fma_f32 {T[3]}, -{cr}, {T[3]}, -{T[1]}')
        cur = (T[2], T[3])
        for q in range(16):
            a(f'v_fmac_f32 {ur[q]}, {l1r}, {cur[0]}')
            a(f'v_fmac_f32 {ui[q]}, {l1r}, {cur[1]}')
            a(f'v_fmac_f32 {ur[q]}, {l1i}, {cur[1]}')
            a(f'v_fmac_f32 {ui[q]}, {n1i}, {cur[0]}')
            cur = (ur[q], ui[q])
        a(Barrier(dsw=True))
        for part, u in enumerate((ur, ui)):
            for q in range(0, 16, 2):
                a(f'v_mul_f32 {u[q]}, {T[16 + q]}, {u[q]}')
                a(f'v_mul_f32 {u[q + 1]}, {T[17 + q]}, {u[q + 1]}')
                a(f'v_cvt_pk_bf16_f32 {T[8 * part + q // 2]}, {u[q]}, {u[q + 1]}')
            a(f'ds_write_b128 {aTw}, {T[8 * part:8 * part + 4]}')
            a(f'ds_write_b128 {aTw}, {T[8 * part + 4:8 * part + 8]} offset:16')
            for s in range(2):
                for j in range(2):
                    b = 32 + 8 * part + 4 * s + 2 * j
                    a(f'ds_read_b64_tr_b16 {hidL[b:b + 2]}, {aTr} offset:{1024 * s + 256 * j}')
        a(hstores(2))

        seq = [(h, k) for h in range(2) for k in range(28)]
        for i in range(PF):
            for x in f_reads(*seq[i]):
                e(x)
        for i, (h, k) in enumerate(seq):
            side = sa if (h == 0 or sa) else sb
            ns = o['side_fa'] if h == 0 else o['side_fb']
            rd = f_reads(*seq[i + PF]) if i + PF < len(seq) else []
            mf = f_mfma(h, k)
            e(mf[0])
            for x in rd[:len(rd) // 2]:
                e(x)
            if not (h == 1 and k == 0):
                self.run_side(side, ns // 2)
            self.tick()
            e(mf[1])
            for x in rd[len(rd) // 2:]:
                e(x)
            self.run_side(side, ns - ns // 2)
            self.tick()
            if i == 27:
                self.stamp()
        self.run_side(sa)
        self.run_side(sb)
        self.stamp()

        accL, accSend, accOwn = accFa, accFb, accS
        aT2 = [AddrReg(aT2r[n]) for n in range(2)]
        aC = [AddrReg(aCr[s]) for s in range(2)]
        self.rk = 0

        def w_reads(idx, part, u, keys, s):
            rr = ring[8 * (idx % (PF + 1)):8 * (idx % (PF + 1)) + 8]
            out = []
            if part < 2:
                for n in range(2):
                    for j in range(2):
                        out.append(I(f'ds_read_b64_tr_b16 {rr[4 * n + 2 * j:4 * n + 2 * j + 2]}, '
                                     f'{aT2[n].at(u * U + 2048 * s + 1024 * j, out)}', lds=('read', keys)))
            else:
                for n in range(2):
                    out.append(I(f'ds_read_b128 {rr[4 * n:4 * n + 4]}, '
                                 f'{aC[s & 1].at(u * U + 4096 * (s >> 1) + 2048 * n, out)}', lds=('read', keys)))
            return out

        NW = 28
        steps = []
        for part in (0, 2, 1):
            for s in range(4):
                steps.append(dict(kind='L', part=part, u=16 + part, keys=[(16 + part, 'L' + 'abc'[part])], s=s,
                                  B=hidL[16 * part + 4 * s:16 * part + 4 * s + 4], acc=accL))
        aloads = []
        for ps in range(2):
            for part in range(3):
                for i in range(3):
                    P = 3 * part + i
                    for s in range(4):
                        n = len(aloads)
                        B = aX[4 * (n % NW):4 * (n % NW) + 4]
                        aloads.append((ps, part, i, s, B))
                        steps.append(dict(kind='R', ps=ps, part=part, u=2 * P, keys=[(2 * P, f'P{P}'), (2 * P + 1, f'P{P}')],
                                          s=s, B=B, acc=(accSend, accOwn)[ps], n=n))
        sHb = sW1[0:6]

        def mf2(idx):
            st = steps[idx]
            rr = ring[8 * (idx % (PF + 1)):8 * (idx % (PF + 1)) + 8]
            out = []
            for n in range(2):
                d = st['acc'][16 * n:16 * n + 16]
                mk = lambda c: I(f'v_mfma_f32_32x32x16_bf16 {d}, {rr[4 * n:4 * n + 4]}, {st["B"]}, {c}')
                if idx == 0:
                    out.append(mk(0))
                elif st['kind'] == 'R' and st['n'] % 36 == 0:
                    out.append(Either(f's_cmp_eq_u32 {skq}, {st["ps"]}', [mk(accL[16 * n:16 * n + 16])], [mk(0)]))
                else:
                    out.append(mk(d))
            return out

        def rd2(idx):
            st = steps[idx]
            out = []
            if idx == 12:
                out.append(I(f's_lshl_b32 {st0}, {skq}, 13'))
                for r in (aT2r[0], aT2r[1], aCr[0], aCr[1]):
                    out.append(I(f'v_add_u32 {r}, {st0}, {r}'))
            return out + w_reads(idx, st['part'], st['u'], st['keys'], st['s'])

        def aload(n):
            ps, part, i, s, B = aloads[n]
            self.e(I(f'buffer_load_dwordx4 {B}, {oH[part]}, {rWS}, {sHb[3 * ps + i]} offen offset:{1024 * s} sc1'))

        sc = []
        a = sc.append
        f_epi(a, 1)
        a(hstores(1))
        for ps in range(2):
            a(f's_mul_i32 {st2}, {sHl[ps]}, 12288')
            for i in range(3):
                a(f's_add_u32 {sHb[3 * ps + i]}, {sPr[i]}, {st2}')
        a(f's_lshl_b32 {st2}, {steam}, 8')
        a(f's_add_u32 {st2}, {st2}, {WS_HFL}')
        for ps in range(2):
            a(f's_lshl_b32 {sHl[ps]}, {sHl[ps]}, 6')
            a(f's_add_u32 {sHl[ps]}, {sHl[ps]}, {st2}')
        a(f's_lshl_b32 {st1}, {stl}, 6')
        a(f's_add_u32 {st2}, {st2}, {st1}')
        a(f's_lshl_b32 {st1}, 1, {sct}')

        for i in range(PF):
            for x in rd2(i):
                e(x)
        for idx in range(12):
            if idx == 8:
                self.run_side(sc)
            mf = mf2(idx)
            rd = rd2(idx + PF) if idx + PF < 12 else []
            e(mf[0])
            for x in rd[:len(rd) // 2]:
                e(x)
            self.run_side(sc, 5)
            self.tick()
            e(mf[1])
            for x in rd[len(rd) // 2:]:
                e(x)
            self.run_side(sc, 5)
            self.tick()
        e(WaitTag('hid'))
        e(f's_atomic_add {st1}, {pws}, {st2} glc')
        while self.dq:
            assert self.dma()
        xe = T[0:8]; De = T[8:10]; oO = oX[0]; aRw = aXr; aRr = aBr[0:2]; oP = oX[1]
        e(f's_mov_b32 {rX[3]}, 0x20000')
        e(f's_lshl_b32 {st0}, {steam}, 6')
        e(f'v_lshrrev_b32 {T[10]}, 4, v0')
        e(f'v_add_u32 {T[11]}, {st0}, {T[10]}')
        e(f'v_mul_u32_u24 {T[11]}, 896, {T[11]}')
        e(f'v_and_b32 {T[12]}, 15, v0')
        e(f's_lshl_b32 {st0}, {sct}, 7')
        e(f'v_lshl_add_u32 {T[13]}, {T[12]}, 3, {st0}')
        e(f'v_add_u32 {T[11]}, {T[11]}, {T[13]}')
        e(f'global_load_dwordx2 {De}, {T[13]}, {pD}')
        for i in range(4):
            e(f's_mov_b32 {st0}, {16 * 896 * i}')
            e(f'buffer_load_dwordx2 {xe[2 * i:2 * i + 2]}, {T[11]}, {rX}, {st0} offen')
        e(f'v_lshlrev_b32 {oO}, 1, {T[11]}')
        e(f'v_lshlrev_b32 {vZ}, 7, {vh}')
        e(f's_min_u32 {sHl[0]}, {sHl[0]}, {sHl[1]}')
        hl = f'buffer_load_dword {vQ}, {vZ}, {rWS}, {sHl[0]} offen sc1'
        e(hl)
        self.vpoll([hl], [f'v_and_b32 {vQ}, {sMask}, {vQ}', f'v_cmp_ne_u32 vcc, {sMask}, {vQ}'], 'hid')
        self.stamp()
        AL = o['alead']
        for n in range(AL):
            aload(n)
        nl = AL
        sd = []
        a = sd.append
        ev = hidL[0:16]
        Df = T[16:20]
        a(f'v_lshlrev_b32 {Df[0]}, 16, {De[0]}'); a(f'v_and_b32 {Df[1]}, 0xffff0000, {De[0]}')
        a(f'v_lshlrev_b32 {Df[2]}, 16, {De[1]}'); a(f'v_and_b32 {Df[3]}, 0xffff0000, {De[1]}')
        for i in range(4):
            for j in range(4):
                src = xe[2 * i + j // 2]
                d = ev[4 * i + j]
                a(f'v_lshlrev_b32 {d}, 16, {src}' if j % 2 == 0 else f'v_and_b32 {d}, 0xffff0000, {src}')
                a(f'v_mul_f32 {d}, {Df[j]}, {d}')
                a(f'v_mul_f32 {d}, {ge[i]}, {d}')
        a(f'v_bfe_u32 {T[20]}, {vl}, 2, 1')
        a(f'v_and_b32 {T[21]}, 3, {vl}')
        a(f'v_lshl_add_u32 {T[20]}, {T[20]}, 4, {T[21]}')
        a(f'v_bfe_u32 {T[21]}, {vl}, 3, 2')
        a(f'v_lshl_add_u32 {T[20]}, {T[21]}, 2, {T[20]}')
        a(f's_lshl_b32 {st2}, {sw}, 13')
        a(f'v_lshl_add_u32 {T[20]}, {T[20]}, 8, {st2}')
        a(f'v_and_b32 {T[21]}, 7, {vl}')
        a(f'v_xor_b32 {T[21]}, {T[21]}, {vh}')
        a(f'v_lshl_add_u32 {aRw[0]}, {T[21]}, 4, {T[20]}')
        for k in range(1, 4):
            a(f'v_xor_b32 {aRw[k]}, {32 * k}, {aRw[0]}')
        a(f'v_and_b32 {T[21]}, 3, {T[10]}')
        a(f'v_xor_b32 {T[21]}, {T[21]}, {T[12]}')
        a(f'v_lshlrev_b32 {T[21]}, 4, {T[21]}')
        a(f'v_lshl_add_u32 {aRr[0]}, {T[10]}, 8, {T[21]}')
        a(f'v_xor_b32 {aRr[1]}, 64, {aRr[0]}')
        sPs, sPl, sFs, sFl = sW2b[0], sW2b[1], sW2b[2], sTmp
        a(f's_mul_i32 {st2}, {steam}, 7')
        a(f's_add_u32 {st2}, {st2}, {sct}')
        a(f's_lshl_b32 {sFs}, {st2}, 6')
        a(f's_add_u32 {sFs}, {sFs}, {WS_PFL}')
        a(f's_lshl_b32 {sPs}, {st2}, 14')
        a(f's_add_u32 {sPs}, {sPs}, {sM4}')
        a(f's_add_u32 {sPs}, {sPs}, {WS_PART}')
        a(f's_xor_b32 {st2}, {steam}, 1')
        a(f's_mul_i32 {st2}, {st2}, 7')
        a(f's_add_u32 {st2}, {st2}, {sct}')
        a(f's_lshl_b32 {sFl}, {st2}, 6')
        a(f's_add_u32 {sFl}, {sFl}, {WS_PFL}')
        a(f's_lshl_b32 {sPl}, {st2}, 14')
        a(f's_add_u32 {sPl}, {sPl}, {sM4}')
        a(f's_add_u32 {sPl}, {sPl}, {WS_PART}')
        se = []
        a = se.append
        pk = hidL[16:32]
        for q in range(16):
            a(f'v_cvt_pk_bf16_f32 {pk[q]}, {accSend[2 * q]}, {accSend[2 * q + 1]}')
        mark = {}
        def pstores():
            mark['nl'] = mark['cur']
            for j in range(4):
                e(I(f'buffer_store_dwordx4 {pk[4 * j:4 * j + 4]}, {oH[0]}, {rWS}, {sPs} offen offset:{1024 * j} sc1', tag='part'))
        a(pstores)
        rp = hidL[32:48]

        for i in range(PF):
            for x in rd2(12 + i):
                e(x)
        sent = False
        nl_at_store = None
        for idx in range(12, 84):
            n = idx - 12
            mf = mf2(idx)
            rd = rd2(idx + PF) if idx + PF < 84 else []
            if nl_at_store is not None and not sent and n == nl_at_store:
                while nl < 72 and nl < n + NW - 1 and nl < n + 2 * AL:
                    aload(nl); nl += 1
                e(WaitTag('part'))
                e(f's_lshl_b32 s3, 1, {sw}')
                e(f's_atomic_add s3, {pws}, {sFs} glc')
                sent = True
            e(mf[0])
            for x in rd[:len(rd) // 2]:
                e(x)
            if nl < 72 and nl < n + NW - 1:
                aload(nl); nl += 1
            side = sd if n < 36 else se
            mark['cur'] = nl
            if n != 36:
                self.run_side(side, 2 if n < 36 else 3)
            e(mf[1])
            for x in rd[len(rd) // 2:]:
                e(x)
            self.run_side(side, 3)
            nl_at_store = mark.get('nl')
            if n == 35:
                assert not sd
            if n == 36 + 12:
                self.barrier()
            if n == o.get('ppoll', 62):
                assert sent
                e(f's_load_dword {sPoll[0]}, {pws}, {sFl} glc')
            if n == o.get('pload', 67):
                self.spoll([sPoll[0]], pws, [sFl], [f's_bitcmp1_b32 {sPoll[0]}, {sw}'], 'part')
                for j in range(4):
                    e(f'buffer_load_dwordx4 {rp[4 * j:4 * j + 4]}, {oH[0]}, {rWS}, {sPl} offen offset:{1024 * j} sc1')
        assert self.unit[0]['free'] and self.unit[3]['free']
        self.stamp()
        for n in range(2):
            for k in range(4):
                for b in range(4):
                    q = 16 * n + 4 * k + b
                    src = rp[q // 2]
                    tt = T[b]
                    e(f'v_lshlrev_b32 {tt}, 16, {src}' if b % 2 == 0 else f'v_and_b32 {tt}, 0xffff0000, {src}')
                    e(f'v_add_f32 {accOwn[q]}, {tt}, {accOwn[q]}')
                e(f'ds_write_b128 {aRw[k]}, {accOwn[16 * n + 4 * k:16 * n + 4 * k + 4]} offset:{128 * n}')
        self.barrier(dsw=True)
        for i in range(4):
            e(f'ds_read_b128 {T[8 * i:8 * i + 4]}, {aRr[i & 1]} offset:{4096 * i}')
            e(f'ds_read_b128 {T[8 * i + 4:8 * i + 8]}, {aRr[i & 1]} offset:{4096 * i + 16384}')
        for i in range(4):
            for j in range(4):
                e(f'v_add_f32 {ev[4 * i + j]}, {T[8 * i + j]}, {ev[4 * i + j]}')
            for j in range(4):
                e(f'v_add_f32 {ev[4 * i + j]}, {T[8 * i + 4 + j]}, {ev[4 * i + j]}')
            e(f's_mov_b32 {st0}, {16 * 1792 * i}')
            e(f'buffer_store_dwordx4 {ev[4 * i:4 * i + 4]}, {oO}, {rOUT}, {st0} offen {o["outst"]}')
        if o['stamps']:
            e('s_waitcnt vmcnt(0)')
            e(f's_memrealtime {sPoll}')
            e('s_waitcnt lgkmcnt(0)')
            for k in range(8):
                e(f'v_mov_b32 {T[k]}, {self.sST[2 * k]}')
            e(f'v_mov_b32 {T[8]}, {sPoll[0]}')
            e(f'v_mov_b32 {T[9]}, {sfast}')
            e(f's_lshl_b32 {st0}, s2, 2')
            e(f's_add_u32 {st0}, {st0}, {sw}')
            e(f's_lshl_b32 {st0}, {st0}, 6')
            e(f's_add_u32 {st0}, {st0}, {WS_STAMP}')
            e(f'v_mov_b32 {T[12]}, 0')
            for k in range(3):
                e(f'buffer_store_dwordx4 {T[4 * k:4 * k + 4]}, {T[12]}, {rWS}, {st0} offen offset:{16 * k}')
        e('s_endpgm')

        h = [
            'L_helper:',
            f'    s_cmp_ge_u32 s2, {NCLR}',
            '    s_cbranch_scc1 L_end',
            f'    s_lshl_b32 {st0}, s2, 12',
            f'    v_lshl_add_u32 {T[4]}, v0, 4, {st0}',
            f'    s_cmp_lt_u32 s2, {WS_HFL // 4096}',
            f'    s_cselect_b32 {st1}, -1, 0',
            f'    v_mov_b32 {T[8]}, {st1}', f'    v_mov_b32 {T[9]}, {st1}',
            f'    v_mov_b32 {T[10]}, {st1}', f'    v_mov_b32 {T[11]}, {st1}',
            '    s_waitcnt lgkmcnt(0)',
            f'    s_mov_b32 {rX[0]}, {pws[0]}', f'    s_mov_b32 {rX[1]}, {pws[1]}',
            f'    s_mov_b32 {rX[2]}, {WS_CLR_END}', f'    s_mov_b32 {rX[3]}, 0x20000',
            f'    buffer_store_dwordx4 {T[8:12]}, {T[4]}, {rX}, 0 offen sc1',
            '    s_waitcnt vmcnt(0)',
            '    s_barrier',
            f'    s_cmp_lg_u32 {sw}, 0',
            '    s_cbranch_scc1 L_end',
            f'    s_mov_b32 {st1}, 1',
            f'    s_atomic_add {st1}, {pdbg}, 0 glc',
            '    s_waitcnt lgkmcnt(0)',
            'L_end:',
            '    s_endpgm']
        prog = insert_nops(insert_waits(self.p))
        self.stats = dict(n=len(prog), est=self.t, vhi=V.hi, ahi=A.hi, shi=S.hi)
        body = render(prog) + '\n' + '\n'.join(self.tail) + '\n' + '\n'.join(h)
        return body


def make(**kw):
    g = Gen(**kw)
    body = g.build()
    ref = open(f'cdna_kernels/{NAME}.s.ref').read().split('\n')
    head = [l for l in ref if l.startswith(';') and '@launch' not in l][:18]
    txt = '\n'.join(head) + '\n; @launch grid=(256,1,1) block=(256,1,1) lds=163840\n'
    txt += f'''.amdgcn_target "amdgcn-amd-amdhsa--gfx950"
.text
.globl {NAME}_kernel
.p2align 8
.type {NAME}_kernel,@function
{NAME}_kernel:
{body}
.section .rodata,"a"
.p2align 6
.amdhsa_kernel {NAME}_kernel
  .amdhsa_next_free_vgpr 512
  .amdhsa_next_free_sgpr 102
  .amdhsa_accum_offset 256
  .amdhsa_group_segment_fixed_size 0
  .amdhsa_kernarg_size 128
  .amdhsa_user_sgpr_count 2
  .amdhsa_user_sgpr_kernarg_segment_ptr 1
  .amdhsa_system_sgpr_workgroup_id_x 1
.end_amdhsa_kernel
'''
    return txt, g.stats


if __name__ == '__main__':
    out = sys.argv[1]
    kw = {}
    for x in sys.argv[2:]:
        k, v = x.split('=', 1)
        try:
            v = int(v)
        except ValueError:
            pass
        kw[k] = v
    txt, st = make(**kw)
    open(out, 'w').write(txt)
    print(out, st)
```

```python
import struct
import sys
from asmlib import *

NAME = 'gated_mix__ssm_conv_s5__dense_activation_relu__prompt'

WS_FIN = 0
WS_HFL = 57344
WS_PFL = 65536
WS_IDS = 79872
WS_CLR_END = 81920
WS_STAMP = 81920
WS_HID = 0x30000
WS_PART = WS_HID + 224 * 49152
WS_END = WS_PART + 224 * 16384
NCLR = WS_CLR_END // 4096

U = 8192
SCR = 19 * U
FX = SCR
GW = SCR + 3840
GT = SCR + 4864


def f32(x):
    return '0x%08x' % struct.unpack('<I', struct.pack('<f', x))[0]


class AddrReg:
    def __init__(self, reg):
        self.reg, self.base = reg, 0

    def at(self, off, out, span=0):
        d = off - self.base
        if d < 0 or d + span > 65535:
            nb = (off // U) * U
            delta = nb - self.base
            out.append(I(f'v_add_u32 {self.reg}, {delta & 0xffffffff:#x}, {self.reg}'))
            self.base = nb
            d = off - nb
        return f'{self.reg} offset:{d}'


class Gen:
    def __init__(self, **kw):
        self.o = dict(stamps=False, lead=8, lag=9, ldx='', ldw='', hst='nt', force_slow=False, pf=2,
                      side_fa=7, side_fb=9, alead=10, outst='', beat=66, ald='sc1')
        self.o.update(kw)
        self.p = []
        self.tail = []
        self.t = 0
        self.mfree = 0
        self.dq = []
        self.dma_n = 0
        self.next_dma = 0
        self.unit = {}
        self.reads = {}
        self.nstamp = 0
        self.stop = 's_memtime' if self.o['stamps'] == 2 else 's_memrealtime'
        self.nlab = 0

    def e(self, x, **kw):
        if isinstance(x, str):
            x = I(x, **kw)
        if x.kind == 'mfma' or (x.kind == 'either' and x.a[0].kind == 'mfma'):
            self.t = max(self.t, self.mfree)
            self.mfree = self.t + 4 * (x.passes if x.kind == 'mfma' else 8)
        self.t += x.cost()
        if x.kind == 'vmem':
            self.dma_n += 1
        if x.kind == 'either' and x.a[0].kind == 'vmem':
            self.dma_n += len(x.a)
            self.next_dma = max(self.next_dma, self.t - 200) + 100 * len(x.a)
        if x.kind == 'ds' and x.lds and x.lds[0] == 'read':
            for k in x.lds[1]:
                st = self.unit.get(k[0])
                if st is None or st['content'] != k[1] or not st['ready']:
                    self.barrier(must=k)
                self.reads[k] -= 1
        if x.kind == 'barrier' and not getattr(x, 'done', False):
            return self.barrier(dsw=x.dsw)
        self.p.append(x)

    def barrier(self, must=None, dsw=False):
        ready, release = [], []
        if must is not None:
            while not (must[0] in self.unit and self.unit[must[0]]['content'] == must[1] and self.unit[must[0]]['left'] == 0):
                assert self.dma(force=True), f'cannot issue DMA for {must}'
        lim = self.dma_n - self.o['lag']
        if must is not None:
            lim = max(lim, self.unit[must[0]]['at'])
        for u, st in self.unit.items():
            k = (u, st['content'])
            if not st['ready'] and st['left'] == 0 and st['at'] <= lim:
                st['ready'] = True
                ready.append(k)
            elif st['ready'] and not st['free'] and self.reads[k] == 0:
                st['free'] = True
                release.append(k)
        b = Barrier(ready, release, dsw)
        b.done = True
        self.t += 8
        self.p.append(b)

    def add_dma(self, m0, loads, keys, nreads):
        for k, n in zip(keys, nreads):
            self.reads[k] = n
        for i, l in enumerate(loads):
            self.dq.append(dict(m0=m0 if i == 0 else None, text=l, keys=keys, first=i == 0, n=len(loads)))

    def dma(self, force=False, allow_barrier=True):
        if not self.dq:
            return False
        d = self.dq[0]
        if d['first']:
            for (u, c) in d['keys']:
                st = self.unit.get(u)
                if st is not None and not st['free']:
                    if allow_barrier and all(self.unit.get(uu) is None or self.unit[uu]['free'] or
                                             (self.unit[uu]['ready'] and self.reads[(uu, self.unit[uu]['content'])] == 0)
                                             for (uu, _) in d['keys']):
                        self.barrier()
                        break
                    return False
            for (u, c) in d['keys']:
                self.unit[u] = dict(content=c, left=d['n'], at=0, ready=False, free=False)
        self.dq.pop(0)
        if d['m0']:
            self.e(d['m0'])
        self.e(I(d['text'], lds=('dma', d['keys'])))
        for (u, c) in d['keys']:
            self.unit[u]['left'] -= 1
            self.unit[u]['at'] = self.dma_n
        return True

    def tick(self):
        if self.dq and self.t >= self.next_dma:
            if self.dma():
                self.next_dma = max(self.next_dma, self.t - 200) + self.o['beat']

    def run_side(self, side, n=None):
        k = 0
        while side and (n is None or k < n):
            x = side.pop(0)
            if callable(x):
                x()
            else:
                self.e(x)
            k += 1
            if n is None:
                self.tick()

    def stamp(self):
        if self.o['stamps']:
            assert self.nstamp < 8
            self.e(f'{self.stop} {self.sST[2 * self.nstamp:2 * self.nstamp + 2]}')
            self.nstamp += 1

    def spoll(self, dst, base, off, test, name):
        self.e('s_waitcnt lgkmcnt(0)')
        for x in test:
            self.e(x)
        self.p.append(Raw(f'    s_cbranch_scc0 L_retry_{name}\nL_ok_{name}:', states=1))
        loads = [f'    s_load_dword {d}, {base}, {o} glc' for d, o in zip(dst, off)]
        self.tail.append('\n'.join([
            f'L_retry_{name}:',
            f'    s_mov_b32 {self.sCnt}, 0x40000',
            f'L_spin_{name}:'] + loads + [
            '    s_waitcnt lgkmcnt(0)'] + ['    ' + x for x in test] + [
            f'    s_cbranch_scc1 L_ok_{name}',
            f'    s_sub_u32 {self.sCnt}, {self.sCnt}, 1',
            f'    s_cbranch_scc0 L_spin_{name}',
            f'    s_branch L_ok_{name}']))

    def vpoll(self, load, test, name):
        for x in test:
            self.e(x)
        self.e('s_nop 3')
        self.p.append(Raw(f'    s_cbranch_vccnz L_retry_{name}\nL_ok_{name}:', states=1))
        self.tail.append('\n'.join(
            [f'L_retry_{name}:', f'    s_mov_b32 {self.sCnt}, 0x40000', f'L_spin_{name}:'] + ['    ' + x for x in load] +
            ['    s_waitcnt vmcnt(0)'] + ['    ' + x for x in test] +
            ['    s_nop 3', f'    s_cbranch_vccz L_ok_{name}',
             f'    s_sub_u32 {self.sCnt}, {self.sCnt}, 1', f'    s_cbranch_scc0 L_spin_{name}', f'    s_branch L_ok_{name}']))

    def build(self):
        o = self.o
        e = self.e
        V = Alloc('v', 256, start=1)
        A = Alloc('a', 256)
        S = Alloc('s', 102, start=4)
        sK = S.get('K', 32, 4)
        rX = S.get('rX', 4, 4); rB = S.get('rB', 4, 4); rW1 = S.get('rW1', 4, 4)
        sCK = S.get('CK', 7); sW1 = S.get('W1o', 7)
        sw = S.get('w'); srb = S.get('rb'); sct = S.get('ct'); shf = S.get('hf'); scg = S.get('cg')
        stl = S.get('tl'); srt = S.get('rt'); skq = S.get('kq'); steam = S.get('team'); srbl = S.get('rbl')
        sM4 = S.get('M4'); sM2 = S.get('M2'); sMl = S.get('Ml')
        st0 = S.get('t0'); st1 = S.get('t1'); st2 = S.get('t2'); self.sCnt = S.get('cnt')
        sfast = S.get('fast'); sPoll = S.get('poll', 2)
        if o['stamps']:
            self.sST = S.get('ST', 16, 2)
        px, pLr, pLi, pBr, pBi, pCr, pCi, pdt, pD, _, pw1, pw2, pgw, pout, pdbg, pws = [sK[2 * i:2 * i + 2] for i in range(16)]
        accS = V.get('accS', 32, 4); accFa = V.get('accFa', 32, 4); accFb = V.get('accFb', 32, 4)
        accG = V.get('accG', 4, 4); hidL = V.get('hidL', 48, 4); T = V.get('T', 32, 4)
        vl = V.get('lane'); vc = V.get('c'); vh = V.get('h')
        oX = V.get('oX', 4); oB = V.get('oB', 2); oW1 = V.get('oW1', 4); oW2 = V.get('oW2', 4); oC = V.get('oC', 4)
        aXr = V.get('aX', 4); aBr = V.get('aB', 4); aGW = V.get('aGW')
        aT1r = V.get('aT1', 2); aT2r = V.get('aT2', 2); aCr = V.get('aC', 2)
        aFX = V.get('aFX'); aGw = V.get('aGw'); aGr = V.get('aGr'); aTw = V.get('aTw'); aTr = V.get('aTr')
        lam = V.get('lam', 13)
        l1r, l1i, n1i, l16r, l16i, l128r, l128i, l1kr, l1ki, lsr, lsi, cr, ci = [lam[i] for i in range(13)]
        vP = V.get('P', 2, 2); vf = V.get('f', 4, 2); omg = V.get('omg'); ge = V.get('ge', 4)
        oH = V.get('oH', 3); oFl = V.get('oFl'); oFs = V.get('oFs'); vQ = V.get('Q'); vZ = V.get('Z')
        aX = A.get('X', 112, 4)
        PF = o['pf']
        ring = A.get('ring', 12 * (PF + 1), 4)

        self.p.append(Raw('    s_cmp_ge_u32 s2, 256\n    s_cbranch_scc1 L_end', states=2))
        e(f's_load_dwordx16 {sK[0:16]}, s[0:1], 0')
        e(f's_load_dwordx16 {sK[16:32]}, s[0:1], 64')
        self.stamp()
        e(f's_getpc_b64 {sPoll}')
        e(f'v_lshlrev_b32 {T[0]}, 7, v0')
        e(f'v_min_u32 {T[0]}, L_end-L_pc0, {T[0]}')
        self.p.insert(len(self.p) - 2, Raw('L_pc0:'))
        e(f'global_load_dword {T[1]}, {T[0]}, {sPoll}')
        e(f'v_lshrrev_b32 {T[2]}, 6, v0')
        e(f'v_and_b32 {vl}, 63, v0')
        e(f'v_readfirstlane_b32 {sw}, {T[2]}')
        self.p.append(Raw('    s_cmp_lt_u32 s2, 32\n    s_cbranch_scc1 L_helper', states=2))
        e(f's_lshr_b32 {st0}, s2, 3')
        e(f's_sub_u32 {st0}, {st0}, 4')
        e(f's_mul_i32 {srbl}, {st0}, 37')
        e(f's_lshr_b32 {srbl}, {srbl}, 8')
        e(f's_mul_i32 {st1}, {srbl}, 7')
        e(f's_sub_u32 {sct}, {st0}, {st1}')
        e(f's_and_b32 {shf}, s2, 1')
        e(f's_bfe_u32 {st0}, s2, 0x20001')
        e(f's_lshl_b32 {srb}, {st0}, 2')
        e(f's_add_u32 {srb}, {srb}, {srbl}')
        e(f's_mul_i32 {scg}, {shf}, 7')
        e(f's_add_u32 {scg}, {scg}, {sct}')
        e(f's_and_b32 {srt}, {sw}, 1')
        e(f's_lshr_b32 {skq}, {sw}, 1')
        e(f's_xor_b32 {st0}, {shf}, {skq}')
        e(f's_xor_b32 {st0}, {st0}, 1')
        e(f's_lshl_b32 {stl}, {st0}, 1')
        e(f's_add_u32 {stl}, {stl}, {srt}')
        e(f's_lshl_b32 {sM4}, {sw}, 12')
        e(f's_lshl_b32 {sM2}, {sw}, 11')
        e(f's_lshl_b32 {st0}, {srbl}, 1')
        e(f's_add_u32 {st0}, {st0}, {sct}')
        for c in range(7):
            if c:
                e(f's_add_u32 {st0}, {st0}, 1')
            e(f's_sub_u32 {st1}, {st0}, 7')
            e(f's_cselect_b32 {st0}, {st0}, {st1}')
            e(f's_lshl_b32 {sCK[c]}, {st0}, 7')
        p7, l3, l4 = T[3], T[4], T[5]
        e(f'v_and_b32 {p7}, 7, {vl}')
        e(f'v_lshrrev_b32 {l3}, 3, {vl}')
        e(f'v_lshrrev_b32 {l4}, 4, {vl}')
        e(f'v_lshrrev_b32 {vh}, 5, {vl}')
        e(f'v_and_b32 {vc}, 31, {vl}')
        e(f'v_xor_b32 {T[6]}, {p7}, {l4}')
        e(f'v_lshlrev_b32 {T[6]}, 4, {T[6]}')
        e(f'v_xor_b32 {T[7]}, 64, {T[6]}')
        e(f's_lshl_b32 {st0}, {srb}, 2')
        e(f's_add_u32 {st0}, {st0}, {stl}')
        e(f's_lshl_b32 {st0}, {st0}, 5')
        e(f'v_and_b32 {T[8]}, 3, {l3}')
        e(f'v_lshl_add_u32 {T[8]}, {vh}, 4, {T[8]}')
        e(f'v_add_u32 {T[8]}, {st0}, {T[8]}')
        e(f'v_mul_u32_u24 {T[8]}, 896, {T[8]}')
        for i in range(4):
            e(f'v_add_u32 {oX[i]}, {T[8]}, {T[6 + (i & 1)]}')
            if i:
                e(f'v_add_u32 {oX[i]}, {i * (4 * 896 - 1024)}, {oX[i]}')
        e(f's_lshl_b32 {st0}, {scg}, 1')
        e(f's_add_u32 {st0}, {st0}, {srt}')
        e(f's_lshl_b32 {st0}, {st0}, 4')
        e(f'v_add_u32 {T[8]}, {st0}, {l3}')
        e(f'v_mul_u32_u24 {T[8]}, 896, {T[8]}')
        e(f'v_add_u32 {oB[0]}, {T[8]}, {T[6]}')
        e(f'v_add_u32 {oB[1]}, {T[8]}, {T[7]}')
        e(f'v_add_u32 {oB[1]}, {8 * 896 - 1024}, {oB[1]}')
        e(f's_lshl_b32 {st0}, {scg}, 6')
        e(f'v_lshl_add_u32 {T[9]}, {vc}, 1, {st0}')
        e(f'v_lshl_add_u32 {T[10]}, {vl}, 4, {sCK[0]}')
        e(f'v_subrev_u32 {T[11]}, 896, {T[10]}')
        e(f'v_min_u32 {T[10]}, {T[10]}, {T[11]}')
        e('s_waitcnt lgkmcnt(0)')
        def srd(r, ptr, size):
            e(f's_mov_b32 {r[0]}, {ptr[0]}')
            e(f's_mov_b32 {r[1]}, {ptr[1]}')
            e(f's_mov_b32 {r[2]}, {size}')
            e(f's_mov_b32 {r[3]}, 0x20000')
        srd(rX, px, 1835008)
        e(f's_cmp_eq_u32 {skq}, 0')
        e(f's_cselect_b32 {rB[0]}, {pBr[0]}, {pBi[0]}')
        e(f's_cselect_b32 {rB[1]}, {pBr[1]}, {pBi[1]}')
        e(f's_mov_b32 {rB[2]}, 401408')
        e(f's_mov_b32 {rB[3]}, 0x20000')

        ux = [0, 3, 6, 9, 12, 15, 0]
        ub = [2, 5, 8, 11, 14, 17, 18]
        for c in range(7):
            self.add_dma(f's_add_u32 m0, {sM4}, {ux[c] * U}',
                         [f'buffer_load_dwordx4 {oX[i]}, {rX}, {sCK[c]} offen offset:{1024 * i} {o["ldx"]} lds' for i in range(4)],
                         [(ux[c], f'X{c}'), (ux[c] + 1, f'X{c}')], [4, 4])
            self.add_dma(f's_add_u32 m0, {sM2}, {ub[c] * U}',
                         [f'buffer_load_dwordx4 {oB[i]}, {rB}, {sCK[c]} offen offset:{1024 * i} {o["ldw"]} lds' for i in range(2)],
                         [(ub[c], f'B{c}')], [8])
        for _ in range(6):
            self.dma()
        prm = T[12:15]
        e(f'global_load_ushort {prm[0]}, {T[9]}, {pLr}')
        e(f'global_load_ushort {prm[1]}, {T[9]}, {pLi}')
        e(f'global_load_ushort {prm[2]}, {T[9]}, {pdt}')
        e(f'global_load_dwordx4 {T[16:20]}, {T[10]}, {pgw}')
        for _ in range(4):
            self.dma()
        self.stamp()

        srd(rW1, pw1, 1605632)
        for c in range(7):
            e(f's_mul_i32 {sW1[c]}, {sCK[c]}, 1792')
        for r in range(4):
            e(f'v_mov_b32 {T[20 + r]}, 0')
        e(f's_lshl_b32 {st0}, {srt}, 10')
        e(f's_add_u32 {st0}, {st0}, {FX}')
        e(f'v_lshl_add_u32 {T[24]}, {vl}, 4, {st0}')
        e(f'ds_write_b128 {T[24]}, {T[20:24]}')
        e(f'v_bfe_u32 {T[25]}, {vl}, 1, 3')
        e(f'v_xor_b32 {T[25]}, {T[25]}, {vh}')
        e(f'v_lshlrev_b32 {T[25]}, 4, {T[25]}')
        e(f'v_lshl_add_u32 {aBr[0]}, {vc}, 7, {T[25]}')
        for s in range(1, 4):
            e(f'v_xor_b32 {aBr[s]}, {32 * s}, {aBr[0]}')
        for s in range(4):
            e(f'v_add_u32 {aXr[s]}, {sM4}, {aBr[s]}')
        aXa = [AddrReg(aXr[s]) for s in range(4)]
        aBa = [AddrReg(aBr[s]) for s in range(4)]
        e(f'v_lshrrev_b32 {T[25]}, 2, {vl}')
        e(f'v_xor_b32 {T[25]}, {T[25]}, {l4}')
        e(f'v_and_b32 {T[25]}, 1, {T[25]}')
        e(f'v_lshlrev_b32 {T[26]}, 4, {vh}')
        e(f'v_add_u32 {T[26]}, {GW}, {T[26]}')
        e(f'v_mov_b32 {aGW}, {FX}')
        e(f'v_cmp_eq_u32 vcc, 0, {T[25]}')
        e(f'v_cndmask_b32 {aGW}, {aGW}, {T[26]}, vcc')
        e(f'v_lshlrev_b32 {T[27]}, 4, {vl}')
        e(f'v_add_u32 {T[28]}, {GW}, {T[27]}')
        e(f'v_and_b32 {T[25]}, 1, {l4}')
        e(f'v_lshlrev_b32 {T[25]}, 2, {T[25]}')
        e(f'v_xor_b32 {T[25]}, {T[25]}, {p7}')
        e(f'v_lshlrev_b32 {T[25]}, 4, {T[25]}')
        e(f's_lshl_b32 {st0}, {sw}, 4')
        e(f'v_add_u32 {T[26]}, {st0}, {l3}')
        e(f'v_mul_u32_u24 {T[26]}, 3584, {T[26]}')
        e(f's_lshl_b32 {st0}, {scg}, 8')
        e(f'v_add3_u32 {oW1[0]}, {T[26]}, {T[25]}, {st0}')
        e(f'v_add_u32 {oW1[1]}, {8 * 3584 - 1024}, {oW1[0]}')
        e(f'v_add_u32 {oW1[2]}, 128, {oW1[0]}')
        e(f'v_add_u32 {oW1[3]}, 128, {oW1[1]}')
        e(f's_lshl_b32 {st0}, {srt}, 5')
        e(f'v_add_u32 {T[26]}, {st0}, {l3}')
        e(f'v_mul_u32_u24 {T[26]}, 896, {T[26]}')
        e(f's_lshl_b32 {st0}, {sct}, 7')
        e(f'v_add3_u32 {oW2[0]}, {T[26]}, {T[25]}, {st0}')
        for i in range(1, 4):
            e(f'v_add_u32 {oW2[i]}, {i * (8 * 896 - 1024)}, {oW2[0]}')
        e(f'v_and_b32 {T[25]}, 3, {vl}')
        e(f'v_xor_b32 {T[25]}, {T[25]}, {l4}')
        e(f'v_lshlrev_b32 {T[25]}, 4, {T[25]}')
        e(f's_lshl_b32 {st0}, {sct}, 6')
        e(f'v_lshrrev_b32 {T[26]}, 2, {vl}')
        e(f'v_add_u32 {T[26]}, {st0}, {T[26]}')
        e(f'v_mul_u32_u24 {T[26]}, 896, {T[26]}')
        e(f'v_add_u32 {oC[0]}, {T[26]}, {T[25]}')
        for i in range(1, 4):
            e(f'v_add_u32 {oC[i]}, {i * (16 * 896 - 1024)}, {oC[0]}')
        e(f'ds_write_b128 {T[28]}, {T[16:20]}')

        for half in range(2):
            for c in range(7):
                u = 2 + 7 * half + c
                self.add_dma(f's_add_u32 m0, {sM2}, {u * U}',
                             [f'buffer_load_dwordx4 {oW1[2 * half + i]}, {rW1}, {sW1[c]} offen offset:{1024 * i} {o["ldw"]} lds'
                              for i in range(2)], [(u, f'W1{half}{c}')], [16])

        side = []
        a = side.append
        Lr, Li, ld = prm[0], prm[1], prm[2]
        t0, t1, t2, t3, a2, rv = T[16], T[17], T[18], T[19], T[20], T[21]
        L2E = 1.4426950408889634
        l2e_hi = struct.unpack('<f', struct.pack('<f', L2E))[0]
        a(f'v_lshlrev_b32 {Lr}, 16, {Lr}')
        a(f'v_lshlrev_b32 {Li}, 16, {Li}')
        a(f'v_lshlrev_b32 {ld}, 16, {ld}')
        a(f's_mov_b32 {st2}, {f32(L2E)}')
        a(f'v_mul_f32 {t0}, {st2}, {ld}')
        a(f'v_fma_f32 {t1}, {ld}, {st2}, -{t0}')
        a(f'v_fmac_f32 {t1}, {f32(L2E - l2e_hi)}, {ld}')
        a(f'v_exp_f32 {t0}, {t0}')
        a(f'v_mul_f32 {t1}, {f32(0.6931471805599453)}, {t1}')
        a(f'v_fmac_f32 {t0}, {t0}, {t1}')
        a(f'v_cvt_pk_bf16_f32 {t0}, {t0}, {t0}')
        a(f'v_lshlrev_b32 {t0}, 16, {t0}')
        a(f'v_mul_f32 {a2}, {t0}, {Lr}')
        a(f'v_mul_f32 {rv}, {t0}, {Li}')
        a(f'v_mul_f32 {a2}, {st2}, {a2}')
        a(f'v_mul_f32 {rv}, 0.15915494, {rv}')
        a(f's_lshl_b32 {st2}, {stl}, 1')
        a(f'v_add_u32 {T[22]}, {st2}, {vh}')
        a(f'v_lshlrev_b32 {t3}, 3, {vc}')
        a(f'v_lshl_add_u32 {aFX}, {T[22]}, 8, {t3}')
        a(f'v_add_u32 {aFX}, {FX}, {aFX}')
        a(f's_sub_u32 {st2}, 15, {srb}')
        a(f's_lshl_b32 {st2}, {st2}, 8')
        a(f'v_add_u32 {t3}, {st2}, {t3}')
        a(f'v_lshl_add_u32 {oFl}, {vh}, 11, {t3}')
        a(f'v_mov_b32 {oFs}, 0x10000')
        a(f'v_cmp_eq_u32 vcc, 7, {T[22]}')
        a(f'v_cndmask_b32 {oFs}, {oFs}, {t3}, vcc')
        a(f'v_lshlrev_b32 {T[22]}, 4, {T[22]}')
        a(f'v_cvt_f32_u32 {T[22]}, {T[22]}')
        for (n, dr, di) in ((None, l1r, l1i), (f32(16.0), l16r, l16i), (f32(128.0), l128r, l128i),
                            (f32(1024.0), l1kr, l1ki), (T[22], lsr, lsi)):
            if n is None:
                a(f'v_exp_f32 {t0}, {a2}')
                a(f'v_rndne_f32 {t2}, {rv}')
                a(f'v_sub_f32 {t1}, {rv}, {t2}')
            else:
                a(f'v_mul_f32 {t0}, {n}, {a2}')
                a(f'v_mul_f32 {t1}, {n}, {rv}')
                a(f'v_exp_f32 {t0}, {t0}')
                a(f'v_rndne_f32 {t2}, {t1}')
                a(f'v_sub_f32 {t1}, {t1}, {t2}')
            a(f'v_cos_f32 {dr}, {t1}')
            a(f'v_sin_f32 {di}, {t1}')
            a(f'v_mul_f32 {dr}, {t0}, {dr}')
            a(f'v_mul_f32 {di}, {t0}, {di}')
        a(f'v_sub_f32 {n1i}, 0, {l1i}')
        a(f'v_mul_f32 {t0}, {Lr}, {Lr}')
        a(f'v_fmac_f32 {t0}, {Li}, {Li}')
        a(f'v_rcp_f32 {t0}, {t0}')
        a(f'v_add_f32 {t1}, -1.0, {l1r}')
        a(f'v_add_f32 {t0}, {t0}, {t0}')
        a(f'v_mul_f32 {cr}, {t1}, {Lr}')
        a(f'v_fmac_f32 {cr}, {l1i}, {Li}')
        a(f'v_mul_f32 {ci}, {l1i}, {Lr}')
        a(f'v_fma_f32 {ci}, -{t1}, {Li}, {ci}')
        a(f'v_mul_f32 {cr}, {t0}, {cr}')
        a(f'v_mul_f32 {ci}, {t0}, {ci}')
        r_, cc_, g1_ = T[23], T[24], T[25]
        a(f'v_bfe_u32 {r_}, {vl}, 2, 2')
        a(f'v_and_b32 {cc_}, 3, {vl}')
        a(f'v_bfe_u32 {g1_}, {vl}, 4, 1')
        a(f'v_lshrrev_b32 {t0}, 1, {r_}')
        a(f'v_lshlrev_b32 {t0}, 6, {t0}')
        a(f'v_lshl_add_u32 {t0}, {g1_}, 5, {t0}')
        a(f'v_lshl_add_u32 {t0}, {cc_}, 3, {t0}')
        a(f'v_lshl_add_u32 {t0}, {r_}, 7, {t0}')
        a(f'v_lshl_add_u32 {aT1r[0]}, {vh}, 10, {t0}')
        a(f'v_xor_b32 {aT1r[1]}, 64, {aT1r[0]}')
        a(f'v_lshl_add_u32 {aT2r[0]}, {vh}, 9, {t0}')
        a(f'v_xor_b32 {aT2r[1]}, 64, {aT2r[0]}')
        a(f'v_xor_b32 {t0}, {r_}, {vh}')
        a(f'v_lshlrev_b32 {t0}, 4, {t0}')
        a(f'v_lshl_add_u32 {aCr[0]}, {vc}, 6, {t0}')
        a(f'v_xor_b32 {aCr[1]}, 32, {aCr[0]}')
        a(f's_add_u32 {st2}, {sM2}, {SCR}')
        a(f'v_lshlrev_b32 {t0}, 5, {vh}')
        a(f'v_lshl_add_u32 {t0}, {vc}, 6, {t0}')
        a(f'v_add_u32 {aTw}, {st2}, {t0}')
        a(f'v_and_b32 {t0}, 1, {cc_}')
        a(f'v_lshlrev_b32 {t0}, 5, {t0}')
        a(f'v_lshl_add_u32 {t0}, {g1_}, 4, {t0}')
        a(f'v_lshrrev_b32 {t1}, 1, {cc_}')
        a(f'v_lshl_add_u32 {t0}, {t1}, 3, {t0}')
        a(f'v_lshl_add_u32 {t0}, {r_}, 6, {t0}')
        a(f'v_lshl_add_u32 {t0}, {vh}, 9, {t0}')
        a(f'v_add_u32 {aTr}, {st2}, {t0}')
        a(f's_lshl_b32 {st2}, {stl}, 7')
        a(f's_add_u32 {st2}, {st2}, {GT}')
        a(f'v_bfe_u32 {t0}, {vl}, 2, 1')
        a(f'v_lshl_add_u32 {t0}, {t0}, 4, {cc_}')
        a(f'v_bfe_u32 {t1}, {vl}, 3, 2')
        a(f'v_lshl_add_u32 {t0}, {t1}, 2, {t0}')
        a(f'v_lshl_add_u32 {aGw}, {t0}, 2, {st2}')
        a(f'v_lshl_add_u32 {aGr}, {vh}, 6, {st2}')
        a(f'v_lshlrev_b32 {oH[0]}, 4, {vl}')
        a(f'v_add_u32 {oH[1]}, 4096, {oH[0]}')
        a(f'v_add_u32 {oH[2]}, 8192, {oH[0]}')
        rW2 = sK[0:4]; rC = sK[4:8]; rWS = sK[12:16]; rFIN = sK[20:24]; rOUT = sK[8:12]
        a(lambda: (e(f's_cmp_eq_u32 {srt}, 0'), e(f's_cselect_b32 {rC[0]}, {pCr[0]}, {pCi[0]}'),
                   e(f's_cselect_b32 {rC[1]}, {pCr[1]}, {pCi[1]}')))
        a(f's_mov_b32 {rC[2]}, 401408'); a(f's_mov_b32 {rC[3]}, 0x20000')
        a(f's_mov_b32 {rW2[0]}, {pw2[0]}'); a(f's_mov_b32 {rW2[1]}, {pw2[1]}')
        a(f's_mov_b32 {rW2[2]}, 1605632'); a(f's_mov_b32 {rW2[3]}, 0x20000')
        a(f's_mov_b32 {rOUT[0]}, {pout[0]}'); a(f's_mov_b32 {rOUT[1]}, {pout[1]}')
        a(f's_mov_b32 {rOUT[2]}, 3670016'); a(f's_mov_b32 {rOUT[3]}, 0x20000')
        a(f's_mov_b32 {rWS[0]}, {pws[0]}'); a(f's_mov_b32 {rWS[1]}, {pws[1]}')
        a(f's_mov_b32 {rWS[2]}, {WS_END}'); a(f's_mov_b32 {rWS[3]}, 0x20000')
        a(f's_lshl_b32 {st2}, {scg}, 12')
        a(lambda: (e(f's_add_u32 {rFIN[0]}, {pws[0]}, {st2}'), e(f's_addc_u32 {rFIN[1]}, {pws[1]}, 0')))
        a(f's_mov_b32 {rFIN[2]}, 4096'); a(f's_mov_b32 {rFIN[3]}, 0x20000')
        a(f's_lshl_b32 {steam}, {srb}, 1')
        a(f's_add_u32 {steam}, {steam}, {shf}')
        a(f's_lshl_b32 {sMl}, {srt}, 12')
        a(f's_lshl_b32 {st2}, {skq}, 11')
        a(f's_add_u32 {sMl}, {sMl}, {st2}')
        side_S = side

        def s_reads(k):
            c, s = divmod(k, 4)
            rr = ring[12 * (k % (PF + 1)):12 * (k % (PF + 1)) + 12]
            out = []
            out.append(I(f'ds_read_b128 {aX[4 * k:4 * k + 4]}, {aXa[s].at(ux[c] * U, out)}',
                         lds=('read', [(ux[c], f'X{c}'), (ux[c] + 1, f'X{c}')])))
            out.append(I(f'ds_read_b128 {rr[0:4]}, {aBa[s].at(ub[c] * U, out, 4096)}', lds=('read', [(ub[c], f'B{c}')])))
            out.append(I(f'ds_read_b128 {rr[4:8]}, {aBa[s].at(ub[c] * U + 4096, out)}', lds=('read', [(ub[c], f'B{c}')])))
            out.append(I(f'ds_read_b128 {rr[8:12]}, {aGW} offset:{32 * k}'))
            return out

        def s_mfma(k):
            rr = ring[12 * (k % (PF + 1)):12 * (k % (PF + 1)) + 12]
            x = aX[4 * k:4 * k + 4]
            z = k == 0
            return [I(f'v_mfma_f32_32x32x16_bf16 {accS[0:16]}, {x}, {rr[0:4]}, {0 if z else accS[0:16]}'),
                    I(f'v_mfma_f32_32x32x16_bf16 {accS[16:32]}, {x}, {rr[4:8]}, {0 if z else accS[16:32]}'),
                    I(f'v_mfma_f32_16x16x32_bf16 {accG}, {rr[8:12]}, {x}, {0 if z else accG}')]

        base_n = self.dma_n - 10
        nside = (len(side_S) + 23) // 24
        for k in range(29):
            c, s = divmod(k, 4)
            if k < 28:
                if s == 0:
                    while self.dma_n - base_n < 6 * (c + 1) + o['lead']:
                        assert self.dma(allow_barrier=False)
                    self.barrier(must=(ub[c], f'B{c}'), dsw=(c == 0))
                    if c == 0:
                        self.stamp()
                    if c == 4:
                        rdy_load = f'global_load_dword {vQ}, {vZ}, {pdbg} sc1'
                        e(f'v_mov_b32 {vZ}, 0')
                        e(rdy_load)
                        base_n += 1
                rd = s_reads(k)
            else:
                rd = []
            mf = s_mfma(k - 1) if k else []
            for x in rd[:2] if mf else rd:
                e(x)
            if mf:
                e(mf[0])
                for x in rd[2:]:
                    e(x)
                self.dma(allow_barrier=False)
                e(mf[1])
                self.run_side(side_S, nside)
                if s & 1:
                    self.dma(allow_barrier=False)
                e(mf[2])
            if k == 25:
                self.vpoll([rdy_load], [f'v_cmp_gt_u32 vcc, {NCLR}, {vQ}'], 'ready')
        self.run_side(side_S)
        self.stamp()
        e(f's_getreg_b32 {st0}, hwreg(HW_REG_XCC_ID, 0, 3)')
        e(f's_lshl_b32 {st0}, {st0}, 2')
        e(f's_lshl_b32 {sfast}, 7, {st0}')
        e(f's_lshl_b32 s3, 1, {st0}')
        e(f's_lshl_b32 {st2}, {steam}, 6')
        e(f's_add_u32 {st2}, {st2}, {WS_IDS}')
        self.p.append(Raw(f'    s_cmp_lg_u32 {sw}, 0\n    s_cbranch_scc1 L_noid', states=2))
        e(f's_atomic_add s3, {pws}, {st2} glc')
        self.p.append(Raw('L_noid:'))

        sPr = sCK[0:3]; sW2o = sCK[3:6]; sMask = sCK[6]
        sCo = rB[0:3]; sLw2 = rB[3]
        sHs = S.get('Hs'); sHl = [S.get(f'Hl{i}') for i in range(2)]
        assert not any('X' in d['keys'][0][1] or d['keys'][0][1][0] == 'B' for d in self.dq)
        pre = []
        a = pre.append
        a(f's_mov_b32 {sMask}, 0')
        for i in range(3):
            def one(i=i):
                e(f's_mul_i32 {st0}, {skq}, 3')
                e(f's_add_u32 {st0}, {st0}, {srbl}')
                e(f's_add_u32 {st0}, {st0}, {i}')
                e(f's_sub_u32 {st2}, {st0}, 6')
                e(f's_cselect_b32 {st0}, {st0}, {st2}')
                e(f's_add_u32 {st0}, {st0}, {sct}')
                e(f's_add_u32 {st0}, {st0}, 1')
                e(f's_sub_u32 {st2}, {st0}, 7')
                e(f's_cselect_b32 {sPr[i]}, {st0}, {st2}')
                e(f's_lshl_b32 {st0}, 1, {sPr[i]}')
                e(f's_or_b32 {sMask}, {sMask}, {st0}')
                e(f's_mul_i32 {st0}, {shf}, 7')
                e(f's_add_u32 {st0}, {st0}, {sPr[i]}')
                e(f's_mul_i32 {sW2o[i]}, {st0}, {128 * 896}')
                e(f's_lshl_b32 {sCo[i]}, {st0}, 6')
                e(f's_mul_i32 {sPr[i]}, {sPr[i]}, 49152')
            a(one)
        sLc = rX[3]
        def loc():
            e(f's_lshl_b32 {st0}, {scg}, 1')
            e(f's_add_u32 {st0}, {st0}, {skq}')
            e(f's_mul_i32 {sLw2}, {st0}, {64 * 896}')
            e(f's_mul_i32 {st0}, {skq}, {32 * 896}')
            e(f's_lshl_b32 {st2}, {scg}, 6')
            e(f's_add_u32 {sHs}, {st0}, {st2}')
        a(loc)
        self.run_side(pre)
        sTmp = S.get('tmpW')
        self.add_dma(f's_add_u32 m0, {sM4}, {16 * U}',
                     [f'buffer_load_dwordx4 {oW2[i]}, {rW2}, {sLw2} offen offset:{1024 * i} {o["ldw"]} lds' for i in range(4)],
                     [(16, 'La'), (17, 'Lb')], [16, 16])
        e(f's_mov_b32 {sTmp}, {sHs}')
        self.add_dma(f's_add_u32 m0, {sMl}, {18 * U}',
                     [f'buffer_load_dwordx4 {oC[i]}, {rC}, {sTmp} offen offset:{1024 * i} {o["ldw"]} lds' for i in range(2)],
                     [(18, 'Lc')], [8])
        sW2b = [sK[18], sK[19], sK[24]]
        for i in range(3):
            e(f's_add_u32 {sW2b[i]}, {sW2o[i]}, {64 * 896}')
        for part in range(3):
            for i in range(3):
                P = 3 * part + i
                if part < 2:
                    so = (sW2o, sW2b)[part][i]
                    lds_ = [f'buffer_load_dwordx4 {oW2[j]}, {rW2}, {so} offen offset:{1024 * j} {o["ldw"]} lds' for j in range(4)]
                    nr = 32
                else:
                    lds_ = [f'buffer_load_dwordx4 {oC[j]}, {rC}, {sCo[i]} offen offset:{1024 * j} {o["ldw"]} lds' for j in range(4)]
                    nr = 16
                self.add_dma(f's_add_u32 m0, {sM4}, {2 * P * U}', lds_, [(2 * P, f'P{P}'), (2 * P + 1, f'P{P}')], [nr, nr])
        e(f's_mul_i32 {st0}, {steam}, {7 * 49152}')
        e(f's_add_u32 {st0}, {st0}, {WS_HID}')
        e(f's_mul_i32 {st2}, {sct}, 49152')
        e(f's_add_u32 {sHs}, {st0}, {st2}')
        e(f's_mul_i32 {st2}, {stl}, 12288')
        e(f's_add_u32 {sHs}, {sHs}, {st2}')
        for i in range(3):
            e(f's_add_u32 {sPr[i]}, {sPr[i]}, {st0}')
        e(f's_xor_b32 {st0}, {shf}, 1')
        e(f's_lshl_b32 {st0}, {st0}, 1')
        e(f's_add_u32 {sHl[0]}, {st0}, {srt}')
        e(f's_xor_b32 {sHl[1]}, {sHl[0]}, 2')
        self.next_dma = self.t

        def hstores(part):
            ins = lambda fl: [I(f'buffer_store_dwordx4 {hidL[16 * part + 4 * j:16 * part + 4 * j + 4]}, {oH[part]}, {rWS}, {sHs} '
                                f'offen offset:{1024 * j} {fl}', tag='hid') for j in range(4)]
            return Either(f's_cmp_eq_u32 {sfast}, 1', ins(o['hst']), ins('sc1'))

        aT1 = [AddrReg(aT1r[n]) for n in range(2)]

        def f_reads(half, k):
            c, s = divmod(k, 4)
            u = 2 + 7 * half + c
            kk = 28 * half + k
            rr = ring[8 * (kk % (PF + 1)):8 * (kk % (PF + 1)) + 8]
            out = []
            for n in range(2):
                for j in range(2):
                    out.append(I(f'ds_read_b64_tr_b16 {rr[4 * n + 2 * j:4 * n + 2 * j + 2]}, '
                                 f'{aT1[n].at(u * U + 2048 * s + 512 * j, out)}', lds=('read', [(u, f'W1{half}{c}')])))
            return out

        def f_mfma(half, k):
            kk = 28 * half + k
            rr = ring[8 * (kk % (PF + 1)):8 * (kk % (PF + 1)) + 8]
            acc = (accFa, accFb)[half]
            return [I(f'v_mfma_f32_32x32x16_bf16 {acc[16 * n:16 * n + 16]}, {rr[4 * n:4 * n + 4]}, {aX[4 * k:4 * k + 4]}, '
                      f'{0 if k == 0 else acc[16 * n:16 * n + 16]}') for n in range(2)]

        def cmadd(a, dr, di, lr, li, xr, xi, ur, ui):
            a(f'v_fma_f32 {dr}, {lr}, {xr}, {ur}')
            a(f'v_fma_f32 {di}, {lr}, {xi}, {ui}')
            a(f'v_fma_f32 {dr}, -{li}, {xi}, {dr}')
            a(f'v_fmac_f32 {di}, {li}, {xr}')

        def f_epi(a, half):
            acc = (accFa, accFb)[half]
            for q in range(0, 32, 2):
                d = hidL[16 * half + q // 2]
                a(f'v_mul_f32 {acc[q]}, {omg}, {acc[q]}')
                a(f'v_mul_f32 {acc[q + 1]}, {omg}, {acc[q + 1]}')
                a(f'v_cvt_pk_bf16_f32 {d}, {acc[q]}, {acc[q + 1]}')
                a(f'v_pk_max_i16 {d}, {d}, 0')

        ur, ui = accS[0:16], accS[16:32]
        sa = []
        a = sa.append
        cur = (ur[0], ui[0])
        for q in range(1, 16):
            d = (vf[2 * (q & 1)], vf[2 * (q & 1) + 1])
            cmadd(a, d[0], d[1], l1r, l1i, cur[0], cur[1], ur[q], ui[q])
            cur = d
        fin = vf[2:4]
        a(f'ds_write_b64 {aFX}, {fin} offset:{7 * 256}')
        z = accG[0]
        a(f'v_cvt_pk_bf16_f32 {z}, {z}, {z}')
        a(f'v_lshlrev_b32 {z}, 16, {z}')
        a(f'v_mul_f32 {z}, {f32(-L2E)}, {z}')
        a(f'v_exp_f32 {z}, {z}')
        a(f'v_add_f32 {z}, 1.0, {z}')
        a(f'v_rcp_f32 {z}, {z}')
        a(f'v_cvt_pk_bf16_f32 {z}, {z}, {z}')
        a(f'v_lshlrev_b32 {z}, 16, {z}')
        a(f'ds_write_b32 {aGw}, {z}')
        a(f'v_sub_f32 {omg}, 1.0, {z}')
        a(f'v_cvt_pk_bf16_f32 {omg}, {omg}, {omg}')
        a(f'v_lshlrev_b32 {omg}, 16, {omg}')
        a(Barrier(dsw=True))
        for m in range(7, 0, -1):
            a(f'ds_read_b64 {T[2 * m:2 * m + 2]}, {aFX} offset:{(7 - m) * 256}')
        a(f's_lshl_b32 {st2}, {shf}, 8')
        a(f's_add_u32 {st2}, {st2}, {GT}')
        a(f'v_lshrrev_b32 {T[0]}, 4, v0')
        a(f'v_lshl_add_u32 {T[0]}, {T[0]}, 2, {st2}')
        for i in range(4):
            a(f'ds_read_b32 {ge[i]}, {T[0]} offset:{64 * i}')
        for i in range(4):
            a(f'ds_read_b128 {T[16 + 4 * i:20 + 4 * i]}, {aGr} offset:{16 * i}')
        cur = (T[14], T[15])
        for m in range(6, 0, -1):
            d = (vP[0], vP[1]) if m & 1 else (vf[0], vf[1])
            cmadd(a, d[0], d[1], l16r, l16i, cur[0], cur[1], T[2 * m], T[2 * m + 1])
            cur = d
        cmadd(a, vf[0], vf[1], l16r, l16i, vP[0], vP[1], fin[0], fin[1])
        a(f'v_min_u32 {vf[0]}, -2, {vf[0]}')
        a(f'v_min_u32 {vf[1]}, -2, {vf[1]}')
        a(I(f'buffer_store_dwordx2 {vf[0:2]}, {oFs}, {rFIN}, 0 offen sc1'))
        for q in range(16):
            a(f'v_mul_f32 {T[0]}, {ci}, {ui[q]}')
            a(f'v_mul_f32 {T[1]}, {ci}, {ur[q]}')
            a(f'v_fma_f32 {ur[q]}, {cr}, {ur[q]}, -{T[0]}')
            a(f'v_fma_f32 {ui[q]}, -{cr}, {ui[q]}, -{T[1]}')

        sb = []
        a = sb.append
        a(f's_lshl_b32 {st2}, {steam}, 6')
        a(f's_add_u32 {st2}, {st2}, {WS_IDS}')
        a(f'buffer_load_dword {vQ}, {vZ}, {rWS}, {st2} offen sc1')
        f_epi(a, 0)
        floads = [f'buffer_load_dwordx2 {T[2 * m - 2:2 * m]}, {oFl}, {rFIN}, 0 offen offset:{256 * m} sc1' for m in range(8, 0, -1)]
        for x in floads:
            a(x)
        def setfast():
            e(f'v_readfirstlane_b32 {sPoll[0]}, {vQ}')
            e(f's_cmp_eq_u32 {sPoll[0]}, {sfast}')
            e(f's_cselect_b32 {sfast}, {0 if o["force_slow"] else 1}, 0')
        a(setfast)
        a(hstores(0))
        chk = [f'v_max3_u32 {vf[0]}, {T[0]}, {T[1]}, {T[2]}']
        for k in range(3, 15, 2):
            chk.append(f'v_max3_u32 {vf[0]}, {vf[0]}, {T[k]}, {T[k + 1]}')
        chk.append(f'v_max_u32 {vf[0]}, {vf[0]}, {T[15]}')
        for x in chk:
            a(x)
        def fcheck():
            e(f'v_cmp_eq_u32 vcc, -1, {vf[0]}')
            e('s_nop 3')
            self.p.append(Raw('    s_cbranch_vccnz L_retry_fin\nL_ok_fin:', states=1))
            self.tail.append('\n'.join(
                ['L_retry_fin:', f'    s_mov_b32 {self.sCnt}, 0x40000', 'L_spin_fin:'] + ['    ' + x for x in floads] +
                ['    s_waitcnt vmcnt(0)'] + ['    ' + x for x in chk] +
                [f'    v_cmp_eq_u32 vcc, -1, {vf[0]}', '    s_nop 3', '    s_cbranch_vccz L_ok_fin',
                 f'    s_sub_u32 {self.sCnt}, {self.sCnt}, 1', '    s_cbranch_scc0 L_spin_fin', '    s_branch L_ok_fin']))
        a(fcheck)
        cur = (T[14], T[15])
        for m in range(7, 0, -1):
            d = (vf[0], vf[1]) if m & 1 else (vf[2], vf[3])
            cmadd(a, d[0], d[1], l128r, l128i, cur[0], cur[1], T[2 * m - 2], T[2 * m - 1])
            cur = d
        a(f'v_mov_b32 {vf[2]}, {vf[0]}')
        a(f'v_mov_b32 {vf[3]}, {vf[1]}')
        a(f'v_permlane32_swap_b32 {vf[0]}, {vf[2]}')
        a(f'v_permlane32_swap_b32 {vf[1]}, {vf[3]}')
        cmadd(a, T[0], T[1], l1kr, l1ki, vf[2], vf[3], vf[0], vf[1])
        cmadd(a, T[2], T[3], lsr, lsi, T[0], T[1], vP[0], vP[1])
        a(f'v_mul_f32 {T[0]}, {ci}, {T[3]}')
        a(f'v_mul_f32 {T[1]}, {ci}, {T[2]}')
        a(f'v_fma_f32 {T[2]}, {cr}, {T[2]}, -{T[0]}')
        a(f'v_fma_f32 {T[3]}, -{cr}, {T[3]}, -{T[1]}')
        cur = (T[2], T[3])
        for q in range(16):
            a(f'v_fmac_f32 {ur[q]}, {l1r}, {cur[0]}')
            a(f'v_fmac_f32 {ui[q]}, {l1r}, {cur[1]}')
            a(f'v_fmac_f32 {ur[q]}, {l1i}, {cur[1]}')
            a(f'v_fmac_f32 {ui[q]}, {n1i}, {cur[0]}')
            cur = (ur[q], ui[q])
        a(Barrier(dsw=True))
        for part, u in enumerate((ur, ui)):
            for q in range(0, 16, 2):
                a(f'v_mul_f32 {u[q]}, {T[16 + q]}, {u[q]}')
                a(f'v_mul_f32 {u[q + 1]}, {T[17 + q]}, {u[q + 1]}')
                a(f'v_cvt_pk_bf16_f32 {T[8 * part + q // 2]}, {u[q]}, {u[q + 1]}')
            a(f'ds_write_b128 {aTw}, {T[8 * part:8 * part + 4]}')
            a(f'ds_write_b128 {aTw}, {T[8 * part + 4:8 * part + 8]} offset:16')
            for s in range(2):
                for j in range(2):
                    b = 32 + 8 * part + 4 * s + 2 * j
                    a(f'ds_read_b64_tr_b16 {hidL[b:b + 2]}, {aTr} offset:{1024 * s + 256 * j}')
        a(hstores(2))

        seq = [(h, k) for h in range(2) for k in range(28)]
        for i in range(PF):
            for x in f_reads(*seq[i]):
                e(x)
        for i, (h, k) in enumerate(seq):
            side = sa if (h == 0 or sa) else sb
            ns = o['side_fa'] if h == 0 else o['side_fb']
            rd = f_reads(*seq[i + PF]) if i + PF < len(seq) else []
            mf = f_mfma(h, k)
            e(mf[0])
            for x in rd[:len(rd) // 2]:
                e(x)
            if not (h == 1 and k == 0):
                self.run_side(side, ns // 2)
            self.tick()
            e(mf[1])
            for x in rd[len(rd) // 2:]:
                e(x)
            self.run_side(side, ns - ns // 2)
            self.tick()
            if i == 27:
                self.stamp()
        self.run_side(sa)
        self.run_side(sb)
        self.stamp()

        accL, accSend, accOwn = accFa, accFb, accS
        aT2 = [AddrReg(aT2r[n]) for n in range(2)]
        aC = [AddrReg(aCr[s]) for s in range(2)]
        self.rk = 0

        def w_reads(idx, part, u, keys, s):
            rr = ring[8 * (idx % (PF + 1)):8 * (idx % (PF + 1)) + 8]
            out = []
            if part < 2:
                for n in range(2):
                    for j in range(2):
                        out.append(I(f'ds_read_b64_tr_b16 {rr[4 * n + 2 * j:4 * n + 2 * j + 2]}, '
                                     f'{aT2[n].at(u * U + 2048 * s + 1024 * j, out)}', lds=('read', keys)))
            else:
                for n in range(2):
                    out.append(I(f'ds_read_b128 {rr[4 * n:4 * n + 4]}, '
                                 f'{aC[s & 1].at(u * U + 4096 * (s >> 1) + 2048 * n, out)}', lds=('read', keys)))
            return out

        NW = 28
        steps = []
        for part in (0, 2, 1):
            for s in range(4):
                steps.append(dict(kind='L', part=part, u=16 + part, keys=[(16 + part, 'L' + 'abc'[part])], s=s,
                                  B=hidL[16 * part + 4 * s:16 * part + 4 * s + 4], acc=accL))
        aloads = []
        for ps in range(2):
            for part in range(3):
                for i in range(3):
                    P = 3 * part + i
                    for s in range(4):
                        n = len(aloads)
                        B = aX[4 * (n % NW):4 * (n % NW) + 4]
                        aloads.append((ps, part, i, s, B))
                        steps.append(dict(kind='R', ps=ps, part=part, u=2 * P, keys=[(2 * P, f'P{P}'), (2 * P + 1, f'P{P}')],
                                          s=s, B=B, acc=(accSend, accOwn)[ps], n=n))
        sHb = sW1[0:6]

        def mf2(idx):
            st = steps[idx]
            rr = ring[8 * (idx % (PF + 1)):8 * (idx % (PF + 1)) + 8]
            out = []
            for n in range(2):
                d = st['acc'][16 * n:16 * n + 16]
                mk = lambda c: I(f'v_mfma_f32_32x32x16_bf16 {d}, {rr[4 * n:4 * n + 4]}, {st["B"]}, {c}')
                if idx == 0:
                    out.append(mk(0))
                elif st['kind'] == 'R' and st['n'] % 36 == 0:
                    out.append(Either(f's_cmp_eq_u32 {skq}, {st["ps"]}', [mk(accL[16 * n:16 * n + 16])], [mk(0)]))
                else:
                    out.append(mk(d))
            return out

        def rd2(idx):
            st = steps[idx]
            out = []
            if idx == 12:
                out.append(I(f's_lshl_b32 {st0}, {skq}, 13'))
                for r in (aT2r[0], aT2r[1], aCr[0], aCr[1]):
                    out.append(I(f'v_add_u32 {r}, {st0}, {r}'))
            return out + w_reads(idx, st['part'], st['u'], st['keys'], st['s'])

        def aload(n):
            ps, part, i, s, B = aloads[n]
            self.e(I(f'buffer_load_dwordx4 {B}, {oH[part]}, {rWS}, {sHb[3 * ps + i]} offen offset:{1024 * s} {o["ald"]}'))

        sc = []
        a = sc.append
        f_epi(a, 1)
        a(hstores(1))
        for ps in range(2):
            a(f's_mul_i32 {st2}, {sHl[ps]}, 12288')
            for i in range(3):
                a(f's_add_u32 {sHb[3 * ps + i]}, {sPr[i]}, {st2}')
        a(f's_lshl_b32 {st2}, {steam}, 8')
        a(f's_add_u32 {st2}, {st2}, {WS_HFL}')
        for ps in range(2):
            a(f's_lshl_b32 {sHl[ps]}, {sHl[ps]}, 6')
            a(f's_add_u32 {sHl[ps]}, {sHl[ps]}, {st2}')
        a(f's_lshl_b32 {st1}, {stl}, 6')
        a(f's_add_u32 {st2}, {st2}, {st1}')
        a(f's_lshl_b32 {st1}, 1, {sct}')

        for i in range(PF):
            for x in rd2(i):
                e(x)
        for idx in range(12):
            if idx == 8:
                self.run_side(sc)
            mf = mf2(idx)
            rd = rd2(idx + PF) if idx + PF < 12 else []
            e(mf[0])
            for x in rd[:len(rd) // 2]:
                e(x)
            self.run_side(sc, 5)
            self.tick()
            e(mf[1])
            for x in rd[len(rd) // 2:]:
                e(x)
            self.run_side(sc, 5)
            self.tick()
        e(WaitTag('hid'))
        e(f's_atomic_add {st1}, {pws}, {st2} glc')
        while self.dq:
            assert self.dma()
        xe = T[0:8]; De = T[8:10]; oO = oX[0]; aRw = aXr; aRr = aBr[0:2]; oP = oX[1]
        e(f's_mov_b32 {rX[3]}, 0x20000')
        e(f's_lshl_b32 {st0}, {steam}, 6')
        e(f'v_lshrrev_b32 {T[10]}, 4, v0')
        e(f'v_add_u32 {T[11]}, {st0}, {T[10]}')
        e(f'v_mul_u32_u24 {T[11]}, 896, {T[11]}')
        e(f'v_and_b32 {T[12]}, 15, v0')
        e(f's_lshl_b32 {st0}, {sct}, 7')
        e(f'v_lshl_add_u32 {T[13]}, {T[12]}, 3, {st0}')
        e(f'v_add_u32 {T[11]}, {T[11]}, {T[13]}')
        e(f'global_load_dwordx2 {De}, {T[13]}, {pD}')
        for i in range(4):
            e(f's_mov_b32 {st0}, {16 * 896 * i}')
            e(f'buffer_load_dwordx2 {xe[2 * i:2 * i + 2]}, {T[11]}, {rX}, {st0} offen')
        e(f'v_lshlrev_b32 {oO}, 1, {T[11]}')
        e(f'v_lshlrev_b32 {vZ}, 7, {vh}')
        e(f's_min_u32 {sHl[0]}, {sHl[0]}, {sHl[1]}')
        hl = f'buffer_load_dword {vQ}, {vZ}, {rWS}, {sHl[0]} offen sc1'
        e(hl)
        self.vpoll([hl], [f'v_and_b32 {vQ}, {sMask}, {vQ}', f'v_cmp_ne_u32 vcc, {sMask}, {vQ}'], 'hid')
        self.stamp()
        AL = o['alead']
        for n in range(AL):
            aload(n)
        nl = AL
        sd = []
        a = sd.append
        ev = hidL[0:16]
        Df = T[16:20]
        a(f'v_lshlrev_b32 {Df[0]}, 16, {De[0]}'); a(f'v_and_b32 {Df[1]}, 0xffff0000, {De[0]}')
        a(f'v_lshlrev_b32 {Df[2]}, 16, {De[1]}'); a(f'v_and_b32 {Df[3]}, 0xffff0000, {De[1]}')
        for i in range(4):
            for j in range(4):
                src = xe[2 * i + j // 2]
                d = ev[4 * i + j]
                a(f'v_lshlrev_b32 {d}, 16, {src}' if j % 2 == 0 else f'v_and_b32 {d}, 0xffff0000, {src}')
                a(f'v_mul_f32 {d}, {Df[j]}, {d}')
                a(f'v_mul_f32 {d}, {ge[i]}, {d}')
        a(f'v_bfe_u32 {T[20]}, {vl}, 2, 1')
        a(f'v_and_b32 {T[21]}, 3, {vl}')
        a(f'v_lshl_add_u32 {T[20]}, {T[20]}, 4, {T[21]}')
        a(f'v_bfe_u32 {T[21]}, {vl}, 3, 2')
        a(f'v_lshl_add_u32 {T[20]}, {T[21]}, 2, {T[20]}')
        a(f's_lshl_b32 {st2}, {sw}, 13')
        a(f'v_lshl_add_u32 {T[20]}, {T[20]}, 8, {st2}')
        a(f'v_and_b32 {T[21]}, 7, {vl}')
        a(f'v_xor_b32 {T[21]}, {T[21]}, {vh}')
        a(f'v_lshl_add_u32 {aRw[0]}, {T[21]}, 4, {T[20]}')
        for k in range(1, 4):
            a(f'v_xor_b32 {aRw[k]}, {32 * k}, {aRw[0]}')
        a(f'v_and_b32 {T[21]}, 3, {T[10]}')
        a(f'v_xor_b32 {T[21]}, {T[21]}, {T[12]}')
        a(f'v_lshlrev_b32 {T[21]}, 4, {T[21]}')
        a(f'v_lshl_add_u32 {aRr[0]}, {T[10]}, 8, {T[21]}')
        a(f'v_xor_b32 {aRr[1]}, 64, {aRr[0]}')
        sPs, sPl, sFs, sFl = sW2b[0], sW2b[1], sW2b[2], sTmp
        a(f's_mul_i32 {st2}, {steam}, 7')
        a(f's_add_u32 {st2}, {st2}, {sct}')
        a(f's_lshl_b32 {sFs}, {st2}, 6')
        a(f's_add_u32 {sFs}, {sFs}, {WS_PFL}')
        a(f's_lshl_b32 {sPs}, {st2}, 14')
        a(f's_add_u32 {sPs}, {sPs}, {sM4}')
        a(f's_add_u32 {sPs}, {sPs}, {WS_PART}')
        a(f's_xor_b32 {st2}, {steam}, 1')
        a(f's_mul_i32 {st2}, {st2}, 7')
        a(f's_add_u32 {st2}, {st2}, {sct}')
        a(f's_lshl_b32 {sFl}, {st2}, 6')
        a(f's_add_u32 {sFl}, {sFl}, {WS_PFL}')
        a(f's_lshl_b32 {sPl}, {st2}, 14')
        a(f's_add_u32 {sPl}, {sPl}, {sM4}')
        a(f's_add_u32 {sPl}, {sPl}, {WS_PART}')
        se = []
        a = se.append
        pk = hidL[16:32]
        for q in range(16):
            a(f'v_cvt_pk_bf16_f32 {pk[q]}, {accSend[2 * q]}, {accSend[2 * q + 1]}')
        mark = {}
        def pstores():
            mark['nl'] = mark['cur']
            for j in range(4):
                e(I(f'buffer_store_dwordx4 {pk[4 * j:4 * j + 4]}, {oH[0]}, {rWS}, {sPs} offen offset:{1024 * j} sc1', tag='part'))
        a(pstores)
        rp = hidL[32:48]

        for i in range(PF):
            for x in rd2(12 + i):
                e(x)
        sent = False
        nl_at_store = None
        for idx in range(12, 84):
            n = idx - 12
            mf = mf2(idx)
            rd = rd2(idx + PF) if idx + PF < 84 else []
            if nl_at_store is not None and not sent and n == nl_at_store:
                while nl < 72 and nl < n + NW - 1 and nl < n + 2 * AL:
                    aload(nl); nl += 1
                e(WaitTag('part'))
                e(f's_lshl_b32 s3, 1, {sw}')
                e(f's_atomic_add s3, {pws}, {sFs} glc')
                sent = True
            e(mf[0])
            for x in rd[:len(rd) // 2]:
                e(x)
            if nl < 72 and nl < n + NW - 1:
                aload(nl); nl += 1
            side = sd if n < 36 else se
            mark['cur'] = nl
            if n != 36:
                self.run_side(side, 2 if n < 36 else 3)
            e(mf[1])
            for x in rd[len(rd) // 2:]:
                e(x)
            self.run_side(side, 3)
            nl_at_store = mark.get('nl')
            if n == 35:
                assert not sd
            if n == 36 + 12:
                self.barrier()
            if n == o.get('ppoll', 62):
                assert sent
                e(f's_load_dword {sPoll[0]}, {pws}, {sFl} glc')
            if n == o.get('pload', 67):
                self.spoll([sPoll[0]], pws, [sFl], [f's_bitcmp1_b32 {sPoll[0]}, {sw}'], 'part')
                for j in range(4):
                    e(f'buffer_load_dwordx4 {rp[4 * j:4 * j + 4]}, {oH[0]}, {rWS}, {sPl} offen offset:{1024 * j} sc1')
        assert self.unit[0]['free'] and self.unit[3]['free']
        self.stamp()
        for n in range(2):
            for k in range(4):
                for b in range(4):
                    q = 16 * n + 4 * k + b
                    src = rp[q // 2]
                    tt = T[b]
                    e(f'v_lshlrev_b32 {tt}, 16, {src}' if b % 2 == 0 else f'v_and_b32 {tt}, 0xffff0000, {src}')
                    e(f'v_add_f32 {accOwn[q]}, {tt}, {accOwn[q]}')
                e(f'ds_write_b128 {aRw[k]}, {accOwn[16 * n + 4 * k:16 * n + 4 * k + 4]} offset:{128 * n}')
        self.barrier(dsw=True)
        for i in range(4):
            e(f'ds_read_b128 {T[8 * i:8 * i + 4]}, {aRr[i & 1]} offset:{4096 * i}')
            e(f'ds_read_b128 {T[8 * i + 4:8 * i + 8]}, {aRr[i & 1]} offset:{4096 * i + 16384}')
        for i in range(4):
            for j in range(4):
                e(f'v_add_f32 {ev[4 * i + j]}, {T[8 * i + j]}, {ev[4 * i + j]}')
            for j in range(4):
                e(f'v_add_f32 {ev[4 * i + j]}, {T[8 * i + 4 + j]}, {ev[4 * i + j]}')
            e(f's_mov_b32 {st0}, {16 * 1792 * i}')
            e(f'buffer_store_dwordx4 {ev[4 * i:4 * i + 4]}, {oO}, {rOUT}, {st0} offen {o["outst"]}')
        if o['stamps']:
            e('s_waitcnt vmcnt(0)')
            e(f'{self.stop} {sPoll}')
            e('s_waitcnt lgkmcnt(0)')
            for k in range(8):
                e(f'v_mov_b32 {T[k]}, {self.sST[2 * k]}')
            e(f'v_mov_b32 {T[8]}, {sPoll[0]}')
            e(f'v_mov_b32 {T[9]}, {sfast}')
            e(f's_lshl_b32 {st0}, s2, 2')
            e(f's_add_u32 {st0}, {st0}, {sw}')
            e(f's_lshl_b32 {st0}, {st0}, 6')
            e(f's_add_u32 {st0}, {st0}, {WS_STAMP}')
            e(f'v_mov_b32 {T[12]}, 0')
            for k in range(3):
                e(f'buffer_store_dwordx4 {T[4 * k:4 * k + 4]}, {T[12]}, {rWS}, {st0} offen offset:{16 * k}')
        e('s_endpgm')

        h = [
            'L_helper:',
            f'    s_cmp_ge_u32 s2, {NCLR}',
            '    s_cbranch_scc1 ' + ('L_calib' if o.get('calib') else 'L_end'),
            f'    s_lshl_b32 {st0}, s2, 12',
            f'    v_lshl_add_u32 {T[4]}, v0, 4, {st0}',
            f'    s_cmp_lt_u32 s2, {WS_HFL // 4096}',
            f'    s_cselect_b32 {st1}, -1, 0',
            f'    v_mov_b32 {T[8]}, {st1}', f'    v_mov_b32 {T[9]}, {st1}',
            f'    v_mov_b32 {T[10]}, {st1}', f'    v_mov_b32 {T[11]}, {st1}',
            '    s_waitcnt lgkmcnt(0)',
            f'    s_mov_b32 {rX[0]}, {pws[0]}', f'    s_mov_b32 {rX[1]}, {pws[1]}',
            f'    s_mov_b32 {rX[2]}, {WS_CLR_END}', f'    s_mov_b32 {rX[3]}, 0x20000',
            f'    buffer_store_dwordx4 {T[8:12]}, {T[4]}, {rX}, 0 offen sc1',
            '    s_waitcnt vmcnt(0)',
            '    s_barrier',
            f'    s_cmp_lg_u32 {sw}, 0',
            '    s_cbranch_scc1 L_end',
            f'    s_mov_b32 {st1}, 1',
            f'    s_atomic_add {st1}, {pdbg}, 0 glc',
            '    s_waitcnt lgkmcnt(0)',
            'L_end:',
            '    s_endpgm']
        if o.get('calib'):
            h += ['L_calib:', '    s_waitcnt lgkmcnt(0)', '    s_memrealtime s[40:41]', '    s_waitcnt lgkmcnt(0)',
                  f'    s_add_u32 s42, s40, {o["calib"]}', 'L_cs:', '    s_memrealtime s[40:41]', '    s_waitcnt lgkmcnt(0)',
                  '    s_sub_u32 s43, s40, s42', '    s_cmp_lt_i32 s43, 0', '    s_cbranch_scc1 L_cs', '    s_endpgm']
        prog = insert_nops(insert_waits(self.p))
        self.stats = dict(n=len(prog), est=self.t, vhi=V.hi, ahi=A.hi, shi=S.hi)
        body = render(prog) + '\n' + '\n'.join(self.tail) + '\n' + '\n'.join(h)
        return body


def make(**kw):
    g = Gen(**kw)
    body = g.build()
    ref = open(f'cdna_kernels/{NAME}.s.ref').read().split('\n')
    head = [l for l in ref if l.startswith(';') and '@launch' not in l][:18]
    txt = '\n'.join(head) + '\n; @launch grid=(256,1,1) block=(256,1,1) lds=163840\n'
    txt += f'''.amdgcn_target "amdgcn-amd-amdhsa--gfx950"
.text
.globl {NAME}_kernel
.p2align 8
.type {NAME}_kernel,@function
{NAME}_kernel:
{body}
.section .rodata,"a"
.p2align 6
.amdhsa_kernel {NAME}_kernel
  .amdhsa_next_free_vgpr 512
  .amdhsa_next_free_sgpr 102
  .amdhsa_accum_offset 256
  .amdhsa_group_segment_fixed_size 0
  .amdhsa_kernarg_size 128
  .amdhsa_user_sgpr_count 2
  .amdhsa_user_sgpr_kernarg_segment_ptr 1
  .amdhsa_system_sgpr_workgroup_id_x 1
.end_amdhsa_kernel
'''
    return txt, g.stats


if __name__ == '__main__':
    out = sys.argv[1]
    kw = {}
    for x in sys.argv[2:]:
        k, v = x.split('=', 1)
        try:
            v = int(v)
        except ValueError:
            pass
        kw[k] = v
    txt, st = make(**kw)
    open(out, 'w').write(txt)
    print(out, st)
```

```python
import struct
import sys
from asmlib import *

NAME = 'gated_mix__ssm_conv_s5__dense_activation_relu__prompt'

WS_FIN = 0
WS_HFL = 57344
WS_PFL = 65536
WS_IDS = 79872
WS_CLR_END = 81920
WS_STAMP = 81920
WS_HID = 0x30000
WS_PART = WS_HID + 224 * 49152
WS_END = WS_PART + 224 * 16384
NCLR = WS_CLR_END // 4096

U = 8192
SCR = 19 * U
FX = SCR
GW = SCR + 3840
GT = SCR + 4864


def f32(x):
    return '0x%08x' % struct.unpack('<I', struct.pack('<f', x))[0]


class AddrReg:
    def __init__(self, reg):
        self.reg, self.base = reg, 0

    def at(self, off, out, span=0):
        d = off - self.base
        if d < 0 or d + span > 65535:
            nb = (off // U) * U
            delta = nb - self.base
            out.append(I(f'v_add_u32 {self.reg}, {delta & 0xffffffff:#x}, {self.reg}'))
            self.base = nb
            d = off - nb
        return f'{self.reg} offset:{d}'


class Gen:
    def __init__(self, **kw):
        self.o = dict(stamps=False, lead=8, lag=9, ldx='', ldw='', hst='nt', force_slow=False, pf=2,
                      side_fa=7, side_fb=9, alead=10, outst='', beat=66, ald='sc1')
        self.o.update(kw)
        self.p = []
        self.tail = []
        self.t = 0
        self.mfree = 0
        self.dq = []
        self.dma_n = 0
        self.next_dma = 0
        self.unit = {}
        self.reads = {}
        self.nstamp = 0
        self.stop = 's_memtime' if self.o['stamps'] == 2 else 's_memrealtime'
        self.nlab = 0

    def e(self, x, **kw):
        if isinstance(x, str):
            x = I(x, **kw)
        if x.kind == 'mfma' or (x.kind == 'either' and x.a[0].kind == 'mfma'):
            self.t = max(self.t, self.mfree)
            self.mfree = self.t + 4 * (x.passes if x.kind == 'mfma' else 8)
        self.t += x.cost()
        if x.kind == 'vmem':
            self.dma_n += 1
        if x.kind == 'either' and x.a[0].kind == 'vmem':
            self.dma_n += len(x.a)
            self.next_dma = max(self.next_dma, self.t - 200) + 100 * len(x.a)
        if x.kind == 'ds' and x.lds and x.lds[0] == 'read':
            for k in x.lds[1]:
                st = self.unit.get(k[0])
                if st is None or st['content'] != k[1] or not st['ready']:
                    self.barrier(must=k)
                self.reads[k] -= 1
        if x.kind == 'barrier' and not getattr(x, 'done', False):
            return self.barrier(dsw=x.dsw)
        self.p.append(x)

    def barrier(self, must=None, dsw=False):
        ready, release = [], []
        if must is not None:
            while not (must[0] in self.unit and self.unit[must[0]]['content'] == must[1] and self.unit[must[0]]['left'] == 0):
                assert self.dma(force=True), f'cannot issue DMA for {must}'
        lim = self.dma_n - self.o['lag']
        if must is not None:
            lim = max(lim, self.unit[must[0]]['at'])
        for u, st in self.unit.items():
            k = (u, st['content'])
            if not st['ready'] and st['left'] == 0 and st['at'] <= lim:
                st['ready'] = True
                ready.append(k)
            elif st['ready'] and not st['free'] and self.reads[k] == 0:
                st['free'] = True
                release.append(k)
        b = Barrier(ready, release, dsw)
        b.done = True
        self.t += 8
        self.p.append(b)

    def add_dma(self, m0, loads, keys, nreads):
        for k, n in zip(keys, nreads):
            self.reads[k] = n
        for i, l in enumerate(loads):
            self.dq.append(dict(m0=m0 if i == 0 else None, text=l, keys=keys, first=i == 0, n=len(loads)))

    def dma(self, force=False, allow_barrier=True):
        if not self.dq:
            return False
        d = self.dq[0]
        if d['first']:
            for (u, c) in d['keys']:
                st = self.unit.get(u)
                if st is not None and not st['free']:
                    if allow_barrier and all(self.unit.get(uu) is None or self.unit[uu]['free'] or
                                             (self.unit[uu]['ready'] and self.reads[(uu, self.unit[uu]['content'])] == 0)
                                             for (uu, _) in d['keys']):
                        self.barrier()
                        break
                    return False
            for (u, c) in d['keys']:
                self.unit[u] = dict(content=c, left=d['n'], at=0, ready=False, free=False)
        self.dq.pop(0)
        if d['m0']:
            self.e(d['m0'])
        self.e(I(d['text'], lds=('dma', d['keys'])))
        for (u, c) in d['keys']:
            self.unit[u]['left'] -= 1
            self.unit[u]['at'] = self.dma_n
        return True

    def tick(self):
        if self.dq and self.t >= self.next_dma:
            if self.dma():
                self.next_dma = max(self.next_dma, self.t - 200) + self.o['beat']

    def run_side(self, side, n=None):
        k = 0
        while side and (n is None or k < n):
            x = side.pop(0)
            if callable(x):
                x()
            else:
                self.e(x)
            k += 1
            if n is None:
                self.tick()

    def stamp(self):
        if self.o['stamps']:
            assert self.nstamp < 8
            self.e(f'{self.stop} {self.sST[2 * self.nstamp:2 * self.nstamp + 2]}')
            self.nstamp += 1

    def spoll(self, dst, base, off, test, name):
        self.e('s_waitcnt lgkmcnt(0)')
        for x in test:
            self.e(x)
        self.p.append(Raw(f'    s_cbranch_scc0 L_retry_{name}\nL_ok_{name}:', states=1))
        loads = [f'    s_load_dword {d}, {base}, {o} glc' for d, o in zip(dst, off)]
        self.tail.append('\n'.join([
            f'L_retry_{name}:',
            f'    s_mov_b32 {self.sCnt}, 0x40000',
            f'L_spin_{name}:'] + loads + [
            '    s_waitcnt lgkmcnt(0)'] + ['    ' + x for x in test] + [
            f'    s_cbranch_scc1 L_ok_{name}',
            f'    s_sub_u32 {self.sCnt}, {self.sCnt}, 1',
            f'    s_cbranch_scc0 L_spin_{name}',
            f'    s_branch L_ok_{name}']))

    def vpoll(self, load, test, name):
        for x in test:
            self.e(x)
        self.e('s_nop 3')
        self.p.append(Raw(f'    s_cbranch_vccnz L_retry_{name}\nL_ok_{name}:', states=1))
        self.tail.append('\n'.join(
            [f'L_retry_{name}:', f'    s_mov_b32 {self.sCnt}, 0x40000', f'L_spin_{name}:'] + ['    ' + x for x in load] +
            ['    s_waitcnt vmcnt(0)'] + ['    ' + x for x in test] +
            ['    s_nop 3', f'    s_cbranch_vccz L_ok_{name}',
             f'    s_sub_u32 {self.sCnt}, {self.sCnt}, 1', f'    s_cbranch_scc0 L_spin_{name}', f'    s_branch L_ok_{name}']))

    def build(self):
        o = self.o
        e = self.e
        V = Alloc('v', 256, start=1)
        A = Alloc('a', 256)
        S = Alloc('s', 102, start=4)
        sK = S.get('K', 32, 4)
        rX = S.get('rX', 4, 4); rB = S.get('rB', 4, 4); rW1 = S.get('rW1', 4, 4)
        sCK = S.get('CK', 7); sW1 = S.get('W1o', 7)
        sw = S.get('w'); srb = S.get('rb'); sct = S.get('ct'); shf = S.get('hf'); scg = S.get('cg')
        stl = S.get('tl'); srt = S.get('rt'); skq = S.get('kq'); steam = S.get('team'); srbl = S.get('rbl')
        sM4 = S.get('M4'); sM2 = S.get('M2'); sMl = S.get('Ml')
        st0 = S.get('t0'); st1 = S.get('t1'); st2 = S.get('t2'); self.sCnt = S.get('cnt')
        sfast = S.get('fast'); sPoll = S.get('poll', 2)
        if o['stamps']:
            self.sST = S.get('ST', 16, 2)
        px, pLr, pLi, pBr, pBi, pCr, pCi, pdt, pD, _, pw1, pw2, pgw, pout, pdbg, pws = [sK[2 * i:2 * i + 2] for i in range(16)]
        accS = V.get('accS', 32, 4); accFa = V.get('accFa', 32, 4); accFb = V.get('accFb', 32, 4)
        accG = V.get('accG', 4, 4); hidL = V.get('hidL', 48, 4); T = V.get('T', 32, 4)
        vl = V.get('lane'); vc = V.get('c'); vh = V.get('h')
        oX = V.get('oX', 4); oB = V.get('oB', 2); oW1 = V.get('oW1', 4); oW2 = V.get('oW2', 4); oC = V.get('oC', 4)
        aXr = V.get('aX', 4); aBr = V.get('aB', 4); aGW = V.get('aGW')
        aT1r = V.get('aT1', 2); aT2r = V.get('aT2', 2); aCr = V.get('aC', 2)
        aFX = V.get('aFX'); aGw = V.get('aGw'); aGr = V.get('aGr'); aTw = V.get('aTw'); aTr = V.get('aTr')
        lam = V.get('lam', 13)
        l1r, l1i, n1i, l16r, l16i, l128r, l128i, l1kr, l1ki, lsr, lsi, cr, ci = [lam[i] for i in range(13)]
        vP = V.get('P', 2, 2); vf = V.get('f', 4, 2); omg = V.get('omg'); ge = V.get('ge', 4)
        oH = V.get('oH', 3); oFl = V.get('oFl'); oFs = V.get('oFs'); vQ = V.get('Q'); vZ = V.get('Z')
        aX = A.get('X', 112, 4)
        PF = o['pf']
        ring = A.get('ring', 12 * (PF + 1), 4)

        if o.get('calib0'):
            self.p.append(Raw(f'''    s_cmp_lg_u32 s2, {o.get('calibwg', 31)}
    s_cbranch_scc1 L_nc
    s_memrealtime s[40:41]
    s_waitcnt lgkmcnt(0)
    s_add_u32 s42, s40, {o["calib0"]}
L_cs0:
    s_memrealtime s[40:41]
    s_waitcnt lgkmcnt(0)
    s_sub_u32 s43, s40, s42
    s_cmp_lt_i32 s43, 0
    s_cbranch_scc1 L_cs0
    s_endpgm
L_nc:'''))
        self.p.append(Raw('    s_cmp_ge_u32 s2, 256\n    s_cbranch_scc1 L_end', states=2))
        e(f's_load_dwordx16 {sK[0:16]}, s[0:1], 0')
        e(f's_load_dwordx16 {sK[16:32]}, s[0:1], 64')
        self.stamp()
        e(f's_getpc_b64 {sPoll}')
        e(f'v_lshlrev_b32 {T[0]}, 7, v0')
        e(f'v_min_u32 {T[0]}, L_end-L_pc0, {T[0]}')
        self.p.insert(len(self.p) - 2, Raw('L_pc0:'))
        e(f'global_load_dword {T[1]}, {T[0]}, {sPoll}')
        e(f'v_lshrrev_b32 {T[2]}, 6, v0')
        e(f'v_and_b32 {vl}, 63, v0')
        e(f'v_readfirstlane_b32 {sw}, {T[2]}')
        self.p.append(Raw('    s_cmp_lt_u32 s2, 32\n    s_cbranch_scc1 L_helper', states=2))
        e(f's_lshr_b32 {st0}, s2, 3')
        e(f's_sub_u32 {st0}, {st0}, 4')
        e(f's_mul_i32 {srbl}, {st0}, 37')
        e(f's_lshr_b32 {srbl}, {srbl}, 8')
        e(f's_mul_i32 {st1}, {srbl}, 7')
        e(f's_sub_u32 {sct}, {st0}, {st1}')
        e(f's_and_b32 {shf}, s2, 1')
        e(f's_bfe_u32 {st0}, s2, 0x20001')
        e(f's_lshl_b32 {srb}, {st0}, 2')
        e(f's_add_u32 {srb}, {srb}, {srbl}')
        e(f's_mul_i32 {scg}, {shf}, 7')
        e(f's_add_u32 {scg}, {scg}, {sct}')
        e(f's_and_b32 {srt}, {sw}, 1')
        e(f's_lshr_b32 {skq}, {sw}, 1')
        e(f's_xor_b32 {st0}, {shf}, {skq}')
        e(f's_xor_b32 {st0}, {st0}, 1')
        e(f's_lshl_b32 {stl}, {st0}, 1')
        e(f's_add_u32 {stl}, {stl}, {srt}')
        e(f's_lshl_b32 {sM4}, {sw}, 12')
        e(f's_lshl_b32 {sM2}, {sw}, 11')
        e(f's_lshl_b32 {st0}, {srbl}, 1')
        e(f's_add_u32 {st0}, {st0}, {sct}')
        for c in range(7):
            if c:
                e(f's_add_u32 {st0}, {st0}, 1')
            e(f's_sub_u32 {st1}, {st0}, 7')
            e(f's_cselect_b32 {st0}, {st0}, {st1}')
            e(f's_lshl_b32 {sCK[c]}, {st0}, 7')
        p7, l3, l4 = T[3], T[4], T[5]
        e(f'v_and_b32 {p7}, 7, {vl}')
        e(f'v_lshrrev_b32 {l3}, 3, {vl}')
        e(f'v_lshrrev_b32 {l4}, 4, {vl}')
        e(f'v_lshrrev_b32 {vh}, 5, {vl}')
        e(f'v_and_b32 {vc}, 31, {vl}')
        e(f'v_xor_b32 {T[6]}, {p7}, {l4}')
        e(f'v_lshlrev_b32 {T[6]}, 4, {T[6]}')
        e(f'v_xor_b32 {T[7]}, 64, {T[6]}')
        e(f's_lshl_b32 {st0}, {srb}, 2')
        e(f's_add_u32 {st0}, {st0}, {stl}')
        e(f's_lshl_b32 {st0}, {st0}, 5')
        e(f'v_and_b32 {T[8]}, 3, {l3}')
        e(f'v_lshl_add_u32 {T[8]}, {vh}, 4, {T[8]}')
        e(f'v_add_u32 {T[8]}, {st0}, {T[8]}')
        e(f'v_mul_u32_u24 {T[8]}, 896, {T[8]}')
        for i in range(4):
            e(f'v_add_u32 {oX[i]}, {T[8]}, {T[6 + (i & 1)]}')
            if i:
                e(f'v_add_u32 {oX[i]}, {i * (4 * 896 - 1024)}, {oX[i]}')
        e(f's_lshl_b32 {st0}, {scg}, 1')
        e(f's_add_u32 {st0}, {st0}, {srt}')
        e(f's_lshl_b32 {st0}, {st0}, 4')
        e(f'v_add_u32 {T[8]}, {st0}, {l3}')
        e(f'v_mul_u32_u24 {T[8]}, 896, {T[8]}')
        e(f'v_add_u32 {oB[0]}, {T[8]}, {T[6]}')
        e(f'v_add_u32 {oB[1]}, {T[8]}, {T[7]}')
        e(f'v_add_u32 {oB[1]}, {8 * 896 - 1024}, {oB[1]}')
        e(f's_lshl_b32 {st0}, {scg}, 6')
        e(f'v_lshl_add_u32 {T[9]}, {vc}, 1, {st0}')
        e(f'v_lshl_add_u32 {T[10]}, {vl}, 4, {sCK[0]}')
        e(f'v_subrev_u32 {T[11]}, 896, {T[10]}')
        e(f'v_min_u32 {T[10]}, {T[10]}, {T[11]}')
        e('s_waitcnt lgkmcnt(0)')
        def srd(r, ptr, size):
            e(f's_mov_b32 {r[0]}, {ptr[0]}')
            e(f's_mov_b32 {r[1]}, {ptr[1]}')
            e(f's_mov_b32 {r[2]}, {size}')
            e(f's_mov_b32 {r[3]}, 0x20000')
        srd(rX, px, 1835008)
        e(f's_cmp_eq_u32 {skq}, 0')
        e(f's_cselect_b32 {rB[0]}, {pBr[0]}, {pBi[0]}')
        e(f's_cselect_b32 {rB[1]}, {pBr[1]}, {pBi[1]}')
        e(f's_mov_b32 {rB[2]}, 401408')
        e(f's_mov_b32 {rB[3]}, 0x20000')

        ux = [0, 3, 6, 9, 12, 15, 0]
        ub = [2, 5, 8, 11, 14, 17, 18]
        for c in range(7):
            self.add_dma(f's_add_u32 m0, {sM4}, {ux[c] * U}',
                         [f'buffer_load_dwordx4 {oX[i]}, {rX}, {sCK[c]} offen offset:{1024 * i} {o["ldx"]} lds' for i in range(4)],
                         [(ux[c], f'X{c}'), (ux[c] + 1, f'X{c}')], [4, 4])
            self.add_dma(f's_add_u32 m0, {sM2}, {ub[c] * U}',
                         [f'buffer_load_dwordx4 {oB[i]}, {rB}, {sCK[c]} offen offset:{1024 * i} {o["ldw"]} lds' for i in range(2)],
                         [(ub[c], f'B{c}')], [8])
        for _ in range(6):
            self.dma()
        prm = T[12:15]
        e(f'global_load_ushort {prm[0]}, {T[9]}, {pLr}')
        e(f'global_load_ushort {prm[1]}, {T[9]}, {pLi}')
        e(f'global_load_ushort {prm[2]}, {T[9]}, {pdt}')
        e(f'global_load_dwordx4 {T[16:20]}, {T[10]}, {pgw}')
        for _ in range(4):
            self.dma()
        self.stamp()

        srd(rW1, pw1, 1605632)
        for c in range(7):
            e(f's_mul_i32 {sW1[c]}, {sCK[c]}, 1792')
        for r in range(4):
            e(f'v_mov_b32 {T[20 + r]}, 0')
        e(f's_lshl_b32 {st0}, {srt}, 10')
        e(f's_add_u32 {st0}, {st0}, {FX}')
        e(f'v_lshl_add_u32 {T[24]}, {vl}, 4, {st0}')
        e(f'ds_write_b128 {T[24]}, {T[20:24]}')
        e(f'v_bfe_u32 {T[25]}, {vl}, 1, 3')
        e(f'v_xor_b32 {T[25]}, {T[25]}, {vh}')
        e(f'v_lshlrev_b32 {T[25]}, 4, {T[25]}')
        e(f'v_lshl_add_u32 {aBr[0]}, {vc}, 7, {T[25]}')
        for s in range(1, 4):
            e(f'v_xor_b32 {aBr[s]}, {32 * s}, {aBr[0]}')
        for s in range(4):
            e(f'v_add_u32 {aXr[s]}, {sM4}, {aBr[s]}')
        aXa = [AddrReg(aXr[s]) for s in range(4)]
        aBa = [AddrReg(aBr[s]) for s in range(4)]
        e(f'v_lshrrev_b32 {T[25]}, 2, {vl}')
        e(f'v_xor_b32 {T[25]}, {T[25]}, {l4}')
        e(f'v_and_b32 {T[25]}, 1, {T[25]}')
        e(f'v_lshlrev_b32 {T[26]}, 4, {vh}')
        e(f'v_add_u32 {T[26]}, {GW}, {T[26]}')
        e(f'v_mov_b32 {aGW}, {FX}')
        e(f'v_cmp_eq_u32 vcc, 0, {T[25]}')
        e(f'v_cndmask_b32 {aGW}, {aGW}, {T[26]}, vcc')
        e(f'v_lshlrev_b32 {T[27]}, 4, {vl}')
        e(f'v_add_u32 {T[28]}, {GW}, {T[27]}')
        e(f'v_and_b32 {T[25]}, 1, {l4}')
        e(f'v_lshlrev_b32 {T[25]}, 2, {T[25]}')
        e(f'v_xor_b32 {T[25]}, {T[25]}, {p7}')
        e(f'v_lshlrev_b32 {T[25]}, 4, {T[25]}')
        e(f's_lshl_b32 {st0}, {sw}, 4')
        e(f'v_add_u32 {T[26]}, {st0}, {l3}')
        e(f'v_mul_u32_u24 {T[26]}, 3584, {T[26]}')
        e(f's_lshl_b32 {st0}, {scg}, 8')
        e(f'v_add3_u32 {oW1[0]}, {T[26]}, {T[25]}, {st0}')
        e(f'v_add_u32 {oW1[1]}, {8 * 3584 - 1024}, {oW1[0]}')
        e(f'v_add_u32 {oW1[2]}, 128, {oW1[0]}')
        e(f'v_add_u32 {oW1[3]}, 128, {oW1[1]}')
        e(f's_lshl_b32 {st0}, {srt}, 5')
        e(f'v_add_u32 {T[26]}, {st0}, {l3}')
        e(f'v_mul_u32_u24 {T[26]}, 896, {T[26]}')
        e(f's_lshl_b32 {st0}, {sct}, 7')
        e(f'v_add3_u32 {oW2[0]}, {T[26]}, {T[25]}, {st0}')
        for i in range(1, 4):
            e(f'v_add_u32 {oW2[i]}, {i * (8 * 896 - 1024)}, {oW2[0]}')
        e(f'v_and_b32 {T[25]}, 3, {vl}')
        e(f'v_xor_b32 {T[25]}, {T[25]}, {l4}')
        e(f'v_lshlrev_b32 {T[25]}, 4, {T[25]}')
        e(f's_lshl_b32 {st0}, {sct}, 6')
        e(f'v_lshrrev_b32 {T[26]}, 2, {vl}')
        e(f'v_add_u32 {T[26]}, {st0}, {T[26]}')
        e(f'v_mul_u32_u24 {T[26]}, 896, {T[26]}')
        e(f'v_add_u32 {oC[0]}, {T[26]}, {T[25]}')
        for i in range(1, 4):
            e(f'v_add_u32 {oC[i]}, {i * (16 * 896 - 1024)}, {oC[0]}')
        e(f'ds_write_b128 {T[28]}, {T[16:20]}')

        for half in range(2):
            for c in range(7):
                u = 2 + 7 * half + c
                self.add_dma(f's_add_u32 m0, {sM2}, {u * U}',
                             [f'buffer_load_dwordx4 {oW1[2 * half + i]}, {rW1}, {sW1[c]} offen offset:{1024 * i} {o["ldw"]} lds'
                              for i in range(2)], [(u, f'W1{half}{c}')], [16])

        side = []
        a = side.append
        Lr, Li, ld = prm[0], prm[1], prm[2]
        t0, t1, t2, t3, a2, rv = T[16], T[17], T[18], T[19], T[20], T[21]
        L2E = 1.4426950408889634
        l2e_hi = struct.unpack('<f', struct.pack('<f', L2E))[0]
        a(f'v_lshlrev_b32 {Lr}, 16, {Lr}')
        a(f'v_lshlrev_b32 {Li}, 16, {Li}')
        a(f'v_lshlrev_b32 {ld}, 16, {ld}')
        a(f's_mov_b32 {st2}, {f32(L2E)}')
        a(f'v_mul_f32 {t0}, {st2}, {ld}')
        a(f'v_fma_f32 {t1}, {ld}, {st2}, -{t0}')
        a(f'v_fmac_f32 {t1}, {f32(L2E - l2e_hi)}, {ld}')
        a(f'v_exp_f32 {t0}, {t0}')
        a(f'v_mul_f32 {t1}, {f32(0.6931471805599453)}, {t1}')
        a(f'v_fmac_f32 {t0}, {t0}, {t1}')
        a(f'v_cvt_pk_bf16_f32 {t0}, {t0}, {t0}')
        a(f'v_lshlrev_b32 {t0}, 16, {t0}')
        a(f'v_mul_f32 {a2}, {t0}, {Lr}')
        a(f'v_mul_f32 {rv}, {t0}, {Li}')
        a(f'v_mul_f32 {a2}, {st2}, {a2}')
        a(f'v_mul_f32 {rv}, 0.15915494, {rv}')
        a(f's_lshl_b32 {st2}, {stl}, 1')
        a(f'v_add_u32 {T[22]}, {st2}, {vh}')
        a(f'v_lshlrev_b32 {t3}, 3, {vc}')
        a(f'v_lshl_add_u32 {aFX}, {T[22]}, 8, {t3}')
        a(f'v_add_u32 {aFX}, {FX}, {aFX}')
        a(f's_sub_u32 {st2}, 15, {srb}')
        a(f's_lshl_b32 {st2}, {st2}, 8')
        a(f'v_add_u32 {t3}, {st2}, {t3}')
        a(f'v_lshl_add_u32 {oFl}, {vh}, 11, {t3}')
        a(f'v_mov_b32 {oFs}, 0x10000')
        a(f'v_cmp_eq_u32 vcc, 7, {T[22]}')
        a(f'v_cndmask_b32 {oFs}, {oFs}, {t3}, vcc')
        a(f'v_lshlrev_b32 {T[22]}, 4, {T[22]}')
        a(f'v_cvt_f32_u32 {T[22]}, {T[22]}')
        for (n, dr, di) in ((None, l1r, l1i), (f32(16.0), l16r, l16i), (f32(128.0), l128r, l128i),
                            (f32(1024.0), l1kr, l1ki), (T[22], lsr, lsi)):
            if n is None:
                a(f'v_exp_f32 {t0}, {a2}')
                a(f'v_rndne_f32 {t2}, {rv}')
                a(f'v_sub_f32 {t1}, {rv}, {t2}')
            else:
                a(f'v_mul_f32 {t0}, {n}, {a2}')
                a(f'v_mul_f32 {t1}, {n}, {rv}')
                a(f'v_exp_f32 {t0}, {t0}')
                a(f'v_rndne_f32 {t2}, {t1}')
                a(f'v_sub_f32 {t1}, {t1}, {t2}')
            a(f'v_cos_f32 {dr}, {t1}')
            a(f'v_sin_f32 {di}, {t1}')
            a(f'v_mul_f32 {dr}, {t0}, {dr}')
            a(f'v_mul_f32 {di}, {t0}, {di}')
        a(f'v_sub_f32 {n1i}, 0, {l1i}')
        a(f'v_mul_f32 {t0}, {Lr}, {Lr}')
        a(f'v_fmac_f32 {t0}, {Li}, {Li}')
        a(f'v_rcp_f32 {t0}, {t0}')
        a(f'v_add_f32 {t1}, -1.0, {l1r}')
        a(f'v_add_f32 {t0}, {t0}, {t0}')
        a(f'v_mul_f32 {cr}, {t1}, {Lr}')
        a(f'v_fmac_f32 {cr}, {l1i}, {Li}')
        a(f'v_mul_f32 {ci}, {l1i}, {Lr}')
        a(f'v_fma_f32 {ci}, -{t1}, {Li}, {ci}')
        a(f'v_mul_f32 {cr}, {t0}, {cr}')
        a(f'v_mul_f32 {ci}, {t0}, {ci}')
        r_, cc_, g1_ = T[23], T[24], T[25]
        a(f'v_bfe_u32 {r_}, {vl}, 2, 2')
        a(f'v_and_b32 {cc_}, 3, {vl}')
        a(f'v_bfe_u32 {g1_}, {vl}, 4, 1')
        a(f'v_lshrrev_b32 {t0}, 1, {r_}')
        a(f'v_lshlrev_b32 {t0}, 6, {t0}')
        a(f'v_lshl_add_u32 {t0}, {g1_}, 5, {t0}')
        a(f'v_lshl_add_u32 {t0}, {cc_}, 3, {t0}')
        a(f'v_lshl_add_u32 {t0}, {r_}, 7, {t0}')
        a(f'v_lshl_add_u32 {aT1r[0]}, {vh}, 10, {t0}')
        a(f'v_xor_b32 {aT1r[1]}, 64, {aT1r[0]}')
        a(f'v_lshl_add_u32 {aT2r[0]}, {vh}, 9, {t0}')
        a(f'v_xor_b32 {aT2r[1]}, 64, {aT2r[0]}')
        a(f'v_xor_b32 {t0}, {r_}, {vh}')
        a(f'v_lshlrev_b32 {t0}, 4, {t0}')
        a(f'v_lshl_add_u32 {aCr[0]}, {vc}, 6, {t0}')
        a(f'v_xor_b32 {aCr[1]}, 32, {aCr[0]}')
        a(f's_add_u32 {st2}, {sM2}, {SCR}')
        a(f'v_lshlrev_b32 {t0}, 5, {vh}')
        a(f'v_lshl_add_u32 {t0}, {vc}, 6, {t0}')
        a(f'v_add_u32 {aTw}, {st2}, {t0}')
        a(f'v_and_b32 {t0}, 1, {cc_}')
        a(f'v_lshlrev_b32 {t0}, 5, {t0}')
        a(f'v_lshl_add_u32 {t0}, {g1_}, 4, {t0}')
        a(f'v_lshrrev_b32 {t1}, 1, {cc_}')
        a(f'v_lshl_add_u32 {t0}, {t1}, 3, {t0}')
        a(f'v_lshl_add_u32 {t0}, {r_}, 6, {t0}')
        a(f'v_lshl_add_u32 {t0}, {vh}, 9, {t0}')
        a(f'v_add_u32 {aTr}, {st2}, {t0}')
        a(f's_lshl_b32 {st2}, {stl}, 7')
        a(f's_add_u32 {st2}, {st2}, {GT}')
        a(f'v_bfe_u32 {t0}, {vl}, 2, 1')
        a(f'v_lshl_add_u32 {t0}, {t0}, 4, {cc_}')
        a(f'v_bfe_u32 {t1}, {vl}, 3, 2')
        a(f'v_lshl_add_u32 {t0}, {t1}, 2, {t0}')
        a(f'v_lshl_add_u32 {aGw}, {t0}, 2, {st2}')
        a(f'v_lshl_add_u32 {aGr}, {vh}, 6, {st2}')
        a(f'v_lshlrev_b32 {oH[0]}, 4, {vl}')
        a(f'v_add_u32 {oH[1]}, 4096, {oH[0]}')
        a(f'v_add_u32 {oH[2]}, 8192, {oH[0]}')
        rW2 = sK[0:4]; rC = sK[4:8]; rWS = sK[12:16]; rFIN = sK[20:24]; rOUT = sK[8:12]
        a(lambda: (e(f's_cmp_eq_u32 {srt}, 0'), e(f's_cselect_b32 {rC[0]}, {pCr[0]}, {pCi[0]}'),
                   e(f's_cselect_b32 {rC[1]}, {pCr[1]}, {pCi[1]}')))
        a(f's_mov_b32 {rC[2]}, 401408'); a(f's_mov_b32 {rC[3]}, 0x20000')
        a(f's_mov_b32 {rW2[0]}, {pw2[0]}'); a(f's_mov_b32 {rW2[1]}, {pw2[1]}')
        a(f's_mov_b32 {rW2[2]}, 1605632'); a(f's_mov_b32 {rW2[3]}, 0x20000')
        a(f's_mov_b32 {rOUT[0]}, {pout[0]}'); a(f's_mov_b32 {rOUT[1]}, {pout[1]}')
        a(f's_mov_b32 {rOUT[2]}, 3670016'); a(f's_mov_b32 {rOUT[3]}, 0x20000')
        a(f's_mov_b32 {rWS[0]}, {pws[0]}'); a(f's_mov_b32 {rWS[1]}, {pws[1]}')
        a(f's_mov_b32 {rWS[2]}, {WS_END}'); a(f's_mov_b32 {rWS[3]}, 0x20000')
        a(f's_lshl_b32 {st2}, {scg}, 12')
        a(lambda: (e(f's_add_u32 {rFIN[0]}, {pws[0]}, {st2}'), e(f's_addc_u32 {rFIN[1]}, {pws[1]}, 0')))
        a(f's_mov_b32 {rFIN[2]}, 4096'); a(f's_mov_b32 {rFIN[3]}, 0x20000')
        a(f's_lshl_b32 {steam}, {srb}, 1')
        a(f's_add_u32 {steam}, {steam}, {shf}')
        a(f's_lshl_b32 {sMl}, {srt}, 12')
        a(f's_lshl_b32 {st2}, {skq}, 11')
        a(f's_add_u32 {sMl}, {sMl}, {st2}')
        side_S = side

        def s_reads(k):
            c, s = divmod(k, 4)
            rr = ring[12 * (k % (PF + 1)):12 * (k % (PF + 1)) + 12]
            out = []
            out.append(I(f'ds_read_b128 {aX[4 * k:4 * k + 4]}, {aXa[s].at(ux[c] * U, out)}',
                         lds=('read', [(ux[c], f'X{c}'), (ux[c] + 1, f'X{c}')])))
            out.append(I(f'ds_read_b128 {rr[0:4]}, {aBa[s].at(ub[c] * U, out, 4096)}', lds=('read', [(ub[c], f'B{c}')])))
            out.append(I(f'ds_read_b128 {rr[4:8]}, {aBa[s].at(ub[c] * U + 4096, out)}', lds=('read', [(ub[c], f'B{c}')])))
            out.append(I(f'ds_read_b128 {rr[8:12]}, {aGW} offset:{32 * k}'))
            return out

        def s_mfma(k):
            rr = ring[12 * (k % (PF + 1)):12 * (k % (PF + 1)) + 12]
            x = aX[4 * k:4 * k + 4]
            z = k == 0
            return [I(f'v_mfma_f32_32x32x16_bf16 {accS[0:16]}, {x}, {rr[0:4]}, {0 if z else accS[0:16]}'),
                    I(f'v_mfma_f32_32x32x16_bf16 {accS[16:32]}, {x}, {rr[4:8]}, {0 if z else accS[16:32]}'),
                    I(f'v_mfma_f32_16x16x32_bf16 {accG}, {rr[8:12]}, {x}, {0 if z else accG}')]

        base_n = self.dma_n - 10
        nside = (len(side_S) + 23) // 24
        for k in range(29):
            c, s = divmod(k, 4)
            if k < 28:
                if s == 0:
                    while self.dma_n - base_n < 6 * (c + 1) + o['lead']:
                        assert self.dma(allow_barrier=False)
                    self.barrier(must=(ub[c], f'B{c}'), dsw=(c == 0))
                    if c == 0:
                        self.stamp()
                    if c == 4:
                        rdy_load = f'global_load_dword {vQ}, {vZ}, {pdbg} sc1'
                        e(f'v_mov_b32 {vZ}, 0')
                        e(rdy_load)
                        base_n += 1
                rd = s_reads(k)
            else:
                rd = []
            mf = s_mfma(k - 1) if k else []
            for x in rd[:2] if mf else rd:
                e(x)
            if mf:
                e(mf[0])
                for x in rd[2:]:
                    e(x)
                self.dma(allow_barrier=False)
                e(mf[1])
                self.run_side(side_S, nside)
                if s & 1:
                    self.dma(allow_barrier=False)
                e(mf[2])
            if k == 25:
                self.vpoll([rdy_load], [f'v_cmp_gt_u32 vcc, {NCLR}, {vQ}'], 'ready')
        self.run_side(side_S)
        self.stamp()
        e(f's_getreg_b32 {st0}, hwreg(HW_REG_XCC_ID, 0, 3)')
        e(f's_lshl_b32 {st0}, {st0}, 2')
        e(f's_lshl_b32 {sfast}, 7, {st0}')
        e(f's_lshl_b32 s3, 1, {st0}')
        e(f's_lshl_b32 {st2}, {steam}, 6')
        e(f's_add_u32 {st2}, {st2}, {WS_IDS}')
        self.p.append(Raw(f'    s_cmp_lg_u32 {sw}, 0\n    s_cbranch_scc1 L_noid', states=2))
        e(f's_atomic_add s3, {pws}, {st2} glc')
        self.p.append(Raw('L_noid:'))

        sPr = sCK[0:3]; sW2o = sCK[3:6]; sMask = sCK[6]
        sCo = rB[0:3]; sLw2 = rB[3]
        sHs = S.get('Hs'); sHl = [S.get(f'Hl{i}') for i in range(2)]
        assert not any('X' in d['keys'][0][1] or d['keys'][0][1][0] == 'B' for d in self.dq)
        pre = []
        a = pre.append
        a(f's_mov_b32 {sMask}, 0')
        for i in range(3):
            def one(i=i):
                e(f's_mul_i32 {st0}, {skq}, 3')
                e(f's_add_u32 {st0}, {st0}, {srbl}')
                e(f's_add_u32 {st0}, {st0}, {i}')
                e(f's_sub_u32 {st2}, {st0}, 6')
                e(f's_cselect_b32 {st0}, {st0}, {st2}')
                e(f's_add_u32 {st0}, {st0}, {sct}')
                e(f's_add_u32 {st0}, {st0}, 1')
                e(f's_sub_u32 {st2}, {st0}, 7')
                e(f's_cselect_b32 {sPr[i]}, {st0}, {st2}')
                e(f's_lshl_b32 {st0}, 1, {sPr[i]}')
                e(f's_or_b32 {sMask}, {sMask}, {st0}')
                e(f's_mul_i32 {st0}, {shf}, 7')
                e(f's_add_u32 {st0}, {st0}, {sPr[i]}')
                e(f's_mul_i32 {sW2o[i]}, {st0}, {128 * 896}')
                e(f's_lshl_b32 {sCo[i]}, {st0}, 6')
                e(f's_mul_i32 {sPr[i]}, {sPr[i]}, 49152')
            a(one)
        sLc = rX[3]
        def loc():
            e(f's_lshl_b32 {st0}, {scg}, 1')
            e(f's_add_u32 {st0}, {st0}, {skq}')
            e(f's_mul_i32 {sLw2}, {st0}, {64 * 896}')
            e(f's_mul_i32 {st0}, {skq}, {32 * 896}')
            e(f's_lshl_b32 {st2}, {scg}, 6')
            e(f's_add_u32 {sHs}, {st0}, {st2}')
        a(loc)
        self.run_side(pre)
        sTmp = S.get('tmpW')
        self.add_dma(f's_add_u32 m0, {sM4}, {16 * U}',
                     [f'buffer_load_dwordx4 {oW2[i]}, {rW2}, {sLw2} offen offset:{1024 * i} {o["ldw"]} lds' for i in range(4)],
                     [(16, 'La'), (17, 'Lb')], [16, 16])
        e(f's_mov_b32 {sTmp}, {sHs}')
        self.add_dma(f's_add_u32 m0, {sMl}, {18 * U}',
                     [f'buffer_load_dwordx4 {oC[i]}, {rC}, {sTmp} offen offset:{1024 * i} {o["ldw"]} lds' for i in range(2)],
                     [(18, 'Lc')], [8])
        sW2b = [sK[18], sK[19], sK[24]]
        for i in range(3):
            e(f's_add_u32 {sW2b[i]}, {sW2o[i]}, {64 * 896}')
        for part in range(3):
            for i in range(3):
                P = 3 * part + i
                if part < 2:
                    so = (sW2o, sW2b)[part][i]
                    lds_ = [f'buffer_load_dwordx4 {oW2[j]}, {rW2}, {so} offen offset:{1024 * j} {o["ldw"]} lds' for j in range(4)]
                    nr = 32
                else:
                    lds_ = [f'buffer_load_dwordx4 {oC[j]}, {rC}, {sCo[i]} offen offset:{1024 * j} {o["ldw"]} lds' for j in range(4)]
                    nr = 16
                self.add_dma(f's_add_u32 m0, {sM4}, {2 * P * U}', lds_, [(2 * P, f'P{P}'), (2 * P + 1, f'P{P}')], [nr, nr])
        e(f's_mul_i32 {st0}, {steam}, {7 * 49152}')
        e(f's_add_u32 {st0}, {st0}, {WS_HID}')
        e(f's_mul_i32 {st2}, {sct}, 49152')
        e(f's_add_u32 {sHs}, {st0}, {st2}')
        e(f's_mul_i32 {st2}, {stl}, 12288')
        e(f's_add_u32 {sHs}, {sHs}, {st2}')
        for i in range(3):
            e(f's_add_u32 {sPr[i]}, {sPr[i]}, {st0}')
        e(f's_xor_b32 {st0}, {shf}, 1')
        e(f's_lshl_b32 {st0}, {st0}, 1')
        e(f's_add_u32 {sHl[0]}, {st0}, {srt}')
        e(f's_xor_b32 {sHl[1]}, {sHl[0]}, 2')
        self.next_dma = self.t

        def hstores(part):
            ins = lambda fl: [I(f'buffer_store_dwordx4 {hidL[16 * part + 4 * j:16 * part + 4 * j + 4]}, {oH[part]}, {rWS}, {sHs} '
                                f'offen offset:{1024 * j} {fl}', tag='hid') for j in range(4)]
            return Either(f's_cmp_eq_u32 {sfast}, 1', ins(o['hst']), ins('sc1'))

        aT1 = [AddrReg(aT1r[n]) for n in range(2)]

        def f_reads(half, k):
            c, s = divmod(k, 4)
            u = 2 + 7 * half + c
            kk = 28 * half + k
            rr = ring[8 * (kk % (PF + 1)):8 * (kk % (PF + 1)) + 8]
            out = []
            for n in range(2):
                for j in range(2):
                    out.append(I(f'ds_read_b64_tr_b16 {rr[4 * n + 2 * j:4 * n + 2 * j + 2]}, '
                                 f'{aT1[n].at(u * U + 2048 * s + 512 * j, out)}', lds=('read', [(u, f'W1{half}{c}')])))
            return out

        def f_mfma(half, k):
            kk = 28 * half + k
            rr = ring[8 * (kk % (PF + 1)):8 * (kk % (PF + 1)) + 8]
            acc = (accFa, accFb)[half]
            return [I(f'v_mfma_f32_32x32x16_bf16 {acc[16 * n:16 * n + 16]}, {rr[4 * n:4 * n + 4]}, {aX[4 * k:4 * k + 4]}, '
                      f'{0 if k == 0 else acc[16 * n:16 * n + 16]}') for n in range(2)]

        def cmadd(a, dr, di, lr, li, xr, xi, ur, ui):
            a(f'v_fma_f32 {dr}, {lr}, {xr}, {ur}')
            a(f'v_fma_f32 {di}, {lr}, {xi}, {ui}')
            a(f'v_fma_f32 {dr}, -{li}, {xi}, {dr}')
            a(f'v_fmac_f32 {di}, {li}, {xr}')

        def f_epi(a, half):
            acc = (accFa, accFb)[half]
            for q in range(0, 32, 2):
                d = hidL[16 * half + q // 2]
                a(f'v_mul_f32 {acc[q]}, {omg}, {acc[q]}')
                a(f'v_mul_f32 {acc[q + 1]}, {omg}, {acc[q + 1]}')
                a(f'v_cvt_pk_bf16_f32 {d}, {acc[q]}, {acc[q + 1]}')
                a(f'v_pk_max_i16 {d}, {d}, 0')

        ur, ui = accS[0:16], accS[16:32]
        sa = []
        a = sa.append
        cur = (ur[0], ui[0])
        for q in range(1, 16):
            d = (vf[2 * (q & 1)], vf[2 * (q & 1) + 1])
            cmadd(a, d[0], d[1], l1r, l1i, cur[0], cur[1], ur[q], ui[q])
            cur = d
        fin = vf[2:4]
        a(f'ds_write_b64 {aFX}, {fin} offset:{7 * 256}')
        z = accG[0]
        a(f'v_cvt_pk_bf16_f32 {z}, {z}, {z}')
        a(f'v_lshlrev_b32 {z}, 16, {z}')
        a(f'v_mul_f32 {z}, {f32(-L2E)}, {z}')
        a(f'v_exp_f32 {z}, {z}')
        a(f'v_add_f32 {z}, 1.0, {z}')
        a(f'v_rcp_f32 {z}, {z}')
        a(f'v_cvt_pk_bf16_f32 {z}, {z}, {z}')
        a(f'v_lshlrev_b32 {z}, 16, {z}')
        a(f'ds_write_b32 {aGw}, {z}')
        a(f'v_sub_f32 {omg}, 1.0, {z}')
        a(f'v_cvt_pk_bf16_f32 {omg}, {omg}, {omg}')
        a(f'v_lshlrev_b32 {omg}, 16, {omg}')
        a(Barrier(dsw=True))
        for m in range(7, 0, -1):
            a(f'ds_read_b64 {T[2 * m:2 * m + 2]}, {aFX} offset:{(7 - m) * 256}')
        a(f's_lshl_b32 {st2}, {shf}, 8')
        a(f's_add_u32 {st2}, {st2}, {GT}')
        a(f'v_lshrrev_b32 {T[0]}, 4, v0')
        a(f'v_lshl_add_u32 {T[0]}, {T[0]}, 2, {st2}')
        for i in range(4):
            a(f'ds_read_b32 {ge[i]}, {T[0]} offset:{64 * i}')
        for i in range(4):
            a(f'ds_read_b128 {T[16 + 4 * i:20 + 4 * i]}, {aGr} offset:{16 * i}')
        cur = (T[14], T[15])
        for m in range(6, 0, -1):
            d = (vP[0], vP[1]) if m & 1 else (vf[0], vf[1])
            cmadd(a, d[0], d[1], l16r, l16i, cur[0], cur[1], T[2 * m], T[2 * m + 1])
            cur = d
        cmadd(a, vf[0], vf[1], l16r, l16i, vP[0], vP[1], fin[0], fin[1])
        a(f'v_min_u32 {vf[0]}, -2, {vf[0]}')
        a(f'v_min_u32 {vf[1]}, -2, {vf[1]}')
        a(I(f'buffer_store_dwordx2 {vf[0:2]}, {oFs}, {rFIN}, 0 offen sc1'))
        for q in range(16):
            a(f'v_mul_f32 {T[0]}, {ci}, {ui[q]}')
            a(f'v_mul_f32 {T[1]}, {ci}, {ur[q]}')
            a(f'v_fma_f32 {ur[q]}, {cr}, {ur[q]}, -{T[0]}')
            a(f'v_fma_f32 {ui[q]}, -{cr}, {ui[q]}, -{T[1]}')

        sb = []
        a = sb.append
        a(f's_lshl_b32 {st2}, {steam}, 6')
        a(f's_add_u32 {st2}, {st2}, {WS_IDS}')
        a(f'buffer_load_dword {vQ}, {vZ}, {rWS}, {st2} offen sc1')
        f_epi(a, 0)
        floads = [f'buffer_load_dwordx2 {T[2 * m - 2:2 * m]}, {oFl}, {rFIN}, 0 offen offset:{256 * m} sc1' for m in range(8, 0, -1)]
        for x in floads:
            a(x)
        def setfast():
            e(f'v_readfirstlane_b32 {sPoll[0]}, {vQ}')
            e(f's_cmp_eq_u32 {sPoll[0]}, {sfast}')
            e(f's_cselect_b32 {sfast}, {0 if o["force_slow"] else 1}, 0')
        a(setfast)
        a(hstores(0))
        chk = [f'v_max3_u32 {vf[0]}, {T[0]}, {T[1]}, {T[2]}']
        for k in range(3, 15, 2):
            chk.append(f'v_max3_u32 {vf[0]}, {vf[0]}, {T[k]}, {T[k + 1]}')
        chk.append(f'v_max_u32 {vf[0]}, {vf[0]}, {T[15]}')
        for x in chk:
            a(x)
        def fcheck():
            e(f'v_cmp_eq_u32 vcc, -1, {vf[0]}')
            e('s_nop 3')
            self.p.append(Raw('    s_cbranch_vccnz L_retry_fin\nL_ok_fin:', states=1))
            self.tail.append('\n'.join(
                ['L_retry_fin:', f'    s_mov_b32 {self.sCnt}, 0x40000', 'L_spin_fin:'] + ['    ' + x for x in floads] +
                ['    s_waitcnt vmcnt(0)'] + ['    ' + x for x in chk] +
                [f'    v_cmp_eq_u32 vcc, -1, {vf[0]}', '    s_nop 3', '    s_cbranch_vccz L_ok_fin',
                 f'    s_sub_u32 {self.sCnt}, {self.sCnt}, 1', '    s_cbranch_scc0 L_spin_fin', '    s_branch L_ok_fin']))
        a(fcheck)
        cur = (T[14], T[15])
        for m in range(7, 0, -1):
            d = (vf[0], vf[1]) if m & 1 else (vf[2], vf[3])
            cmadd(a, d[0], d[1], l128r, l128i, cur[0], cur[1], T[2 * m - 2], T[2 * m - 1])
            cur = d
        a(f'v_mov_b32 {vf[2]}, {vf[0]}')
        a(f'v_mov_b32 {vf[3]}, {vf[1]}')
        a(f'v_permlane32_swap_b32 {vf[0]}, {vf[2]}')
        a(f'v_permlane32_swap_b32 {vf[1]}, {vf[3]}')
        cmadd(a, T[0], T[1], l1kr, l1ki, vf[2], vf[3], vf[0], vf[1])
        cmadd(a, T[2], T[3], lsr, lsi, T[0], T[1], vP[0], vP[1])
        a(f'v_mul_f32 {T[0]}, {ci}, {T[3]}')
        a(f'v_mul_f32 {T[1]}, {ci}, {T[2]}')
        a(f'v_fma_f32 {T[2]}, {cr}, {T[2]}, -{T[0]}')
        a(f'v_fma_f32 {T[3]}, -{cr}, {T[3]}, -{T[1]}')
        cur = (T[2], T[3])
        for q in range(16):
            a(f'v_fmac_f32 {ur[q]}, {l1r}, {cur[0]}')
            a(f'v_fmac_f32 {ui[q]}, {l1r}, {cur[1]}')
            a(f'v_fmac_f32 {ur[q]}, {l1i}, {cur[1]}')
            a(f'v_fmac_f32 {ui[q]}, {n1i}, {cur[0]}')
            cur = (ur[q], ui[q])
        a(Barrier(dsw=True))
        for part, u in enumerate((ur, ui)):
            for q in range(0, 16, 2):
                a(f'v_mul_f32 {u[q]}, {T[16 + q]}, {u[q]}')
                a(f'v_mul_f32 {u[q + 1]}, {T[17 + q]}, {u[q + 1]}')
                a(f'v_cvt_pk_bf16_f32 {T[8 * part + q // 2]}, {u[q]}, {u[q + 1]}')
            a(f'ds_write_b128 {aTw}, {T[8 * part:8 * part + 4]}')
            a(f'ds_write_b128 {aTw}, {T[8 * part + 4:8 * part + 8]} offset:16')
            for s in range(2):
                for j in range(2):
                    b = 32 + 8 * part + 4 * s + 2 * j
                    a(f'ds_read_b64_tr_b16 {hidL[b:b + 2]}, {aTr} offset:{1024 * s + 256 * j}')
        a(hstores(2))

        seq = [(h, k) for h in range(2) for k in range(28)]
        for i in range(PF):
            for x in f_reads(*seq[i]):
                e(x)
        for i, (h, k) in enumerate(seq):
            side = sa if (h == 0 or sa) else sb
            ns = o['side_fa'] if h == 0 else o['side_fb']
            rd = f_reads(*seq[i + PF]) if i + PF < len(seq) else []
            mf = f_mfma(h, k)
            e(mf[0])
            for x in rd[:len(rd) // 2]:
                e(x)
            if not (h == 1 and k == 0):
                self.run_side(side, ns // 2)
            self.tick()
            e(mf[1])
            for x in rd[len(rd) // 2:]:
                e(x)
            self.run_side(side, ns - ns // 2)
            self.tick()
            if i == 27:
                self.stamp()
        self.run_side(sa)
        self.run_side(sb)
        self.stamp()

        accL, accSend, accOwn = accFa, accFb, accS
        aT2 = [AddrReg(aT2r[n]) for n in range(2)]
        aC = [AddrReg(aCr[s]) for s in range(2)]
        self.rk = 0

        def w_reads(idx, part, u, keys, s):
            rr = ring[8 * (idx % (PF + 1)):8 * (idx % (PF + 1)) + 8]
            out = []
            if part < 2:
                for n in range(2):
                    for j in range(2):
                        out.append(I(f'ds_read_b64_tr_b16 {rr[4 * n + 2 * j:4 * n + 2 * j + 2]}, '
                                     f'{aT2[n].at(u * U + 2048 * s + 1024 * j, out)}', lds=('read', keys)))
            else:
                for n in range(2):
                    out.append(I(f'ds_read_b128 {rr[4 * n:4 * n + 4]}, '
                                 f'{aC[s & 1].at(u * U + 4096 * (s >> 1) + 2048 * n, out)}', lds=('read', keys)))
            return out

        NW = 28
        steps = []
        for part in (0, 2, 1):
            for s in range(4):
                steps.append(dict(kind='L', part=part, u=16 + part, keys=[(16 + part, 'L' + 'abc'[part])], s=s,
                                  B=hidL[16 * part + 4 * s:16 * part + 4 * s + 4], acc=accL))
        aloads = []
        for ps in range(2):
            for part in range(3):
                for i in range(3):
                    P = 3 * part + i
                    for s in range(4):
                        n = len(aloads)
                        B = aX[4 * (n % NW):4 * (n % NW) + 4]
                        aloads.append((ps, part, i, s, B))
                        steps.append(dict(kind='R', ps=ps, part=part, u=2 * P, keys=[(2 * P, f'P{P}'), (2 * P + 1, f'P{P}')],
                                          s=s, B=B, acc=(accSend, accOwn)[ps], n=n))
        sHb = sW1[0:6]

        def mf2(idx):
            st = steps[idx]
            rr = ring[8 * (idx % (PF + 1)):8 * (idx % (PF + 1)) + 8]
            out = []
            for n in range(2):
                d = st['acc'][16 * n:16 * n + 16]
                mk = lambda c: I(f'v_mfma_f32_32x32x16_bf16 {d}, {rr[4 * n:4 * n + 4]}, {st["B"]}, {c}')
                if idx == 0:
                    out.append(mk(0))
                elif st['kind'] == 'R' and st['n'] % 36 == 0:
                    out.append(Either(f's_cmp_eq_u32 {skq}, {st["ps"]}', [mk(accL[16 * n:16 * n + 16])], [mk(0)]))
                else:
                    out.append(mk(d))
            return out

        def rd2(idx):
            st = steps[idx]
            out = []
            if idx == 12:
                out.append(I(f's_lshl_b32 {st0}, {skq}, 13'))
                for r in (aT2r[0], aT2r[1], aCr[0], aCr[1]):
                    out.append(I(f'v_add_u32 {r}, {st0}, {r}'))
            return out + w_reads(idx, st['part'], st['u'], st['keys'], st['s'])

        def aload(n):
            ps, part, i, s, B = aloads[n]
            self.e(I(f'buffer_load_dwordx4 {B}, {oH[part]}, {rWS}, {sHb[3 * ps + i]} offen offset:{1024 * s} {o["ald"]}'))

        sc = []
        a = sc.append
        f_epi(a, 1)
        a(hstores(1))
        for ps in range(2):
            a(f's_mul_i32 {st2}, {sHl[ps]}, 12288')
            for i in range(3):
                a(f's_add_u32 {sHb[3 * ps + i]}, {sPr[i]}, {st2}')
        a(f's_lshl_b32 {st2}, {steam}, 8')
        a(f's_add_u32 {st2}, {st2}, {WS_HFL}')
        for ps in range(2):
            a(f's_lshl_b32 {sHl[ps]}, {sHl[ps]}, 6')
            a(f's_add_u32 {sHl[ps]}, {sHl[ps]}, {st2}')
        a(f's_lshl_b32 {st1}, {stl}, 6')
        a(f's_add_u32 {st2}, {st2}, {st1}')
        a(f's_lshl_b32 {st1}, 1, {sct}')

        for i in range(PF):
            for x in rd2(i):
                e(x)
        for idx in range(12):
            if idx == 8:
                self.run_side(sc)
            mf = mf2(idx)
            rd = rd2(idx + PF) if idx + PF < 12 else []
            e(mf[0])
            for x in rd[:len(rd) // 2]:
                e(x)
            self.run_side(sc, 5)
            self.tick()
            e(mf[1])
            for x in rd[len(rd) // 2:]:
                e(x)
            self.run_side(sc, 5)
            self.tick()
        e(WaitTag('hid'))
        e(f's_atomic_add {st1}, {pws}, {st2} glc')
        while self.dq:
            assert self.dma()
        xe = T[0:8]; De = T[8:10]; oO = oX[0]; aRw = aXr; aRr = aBr[0:2]; oP = oX[1]
        e(f's_mov_b32 {rX[3]}, 0x20000')
        e(f's_lshl_b32 {st0}, {steam}, 6')
        e(f'v_lshrrev_b32 {T[10]}, 4, v0')
        e(f'v_add_u32 {T[11]}, {st0}, {T[10]}')
        e(f'v_mul_u32_u24 {T[11]}, 896, {T[11]}')
        e(f'v_and_b32 {T[12]}, 15, v0')
        e(f's_lshl_b32 {st0}, {sct}, 7')
        e(f'v_lshl_add_u32 {T[13]}, {T[12]}, 3, {st0}')
        e(f'v_add_u32 {T[11]}, {T[11]}, {T[13]}')
        e(f'global_load_dwordx2 {De}, {T[13]}, {pD}')
        for i in range(4):
            e(f's_mov_b32 {st0}, {16 * 896 * i}')
            e(f'buffer_load_dwordx2 {xe[2 * i:2 * i + 2]}, {T[11]}, {rX}, {st0} offen')
        e(f'v_lshlrev_b32 {oO}, 1, {T[11]}')
        e(f'v_lshlrev_b32 {vZ}, 7, {vh}')
        e(f's_min_u32 {sHl[0]}, {sHl[0]}, {sHl[1]}')
        hl = f'buffer_load_dword {vQ}, {vZ}, {rWS}, {sHl[0]} offen sc1'
        e(hl)
        self.vpoll([hl], [f'v_and_b32 {vQ}, {sMask}, {vQ}', f'v_cmp_ne_u32 vcc, {sMask}, {vQ}'], 'hid')
        self.stamp()
        AL = o['alead']
        for n in range(AL):
            aload(n)
        nl = AL
        sd = []
        a = sd.append
        ev = hidL[0:16]
        Df = T[16:20]
        a(f'v_lshlrev_b32 {Df[0]}, 16, {De[0]}'); a(f'v_and_b32 {Df[1]}, 0xffff0000, {De[0]}')
        a(f'v_lshlrev_b32 {Df[2]}, 16, {De[1]}'); a(f'v_and_b32 {Df[3]}, 0xffff0000, {De[1]}')
        for i in range(4):
            for j in range(4):
                src = xe[2 * i + j // 2]
                d = ev[4 * i + j]
                a(f'v_lshlrev_b32 {d}, 16, {src}' if j % 2 == 0 else f'v_and_b32 {d}, 0xffff0000, {src}')
                a(f'v_mul_f32 {d}, {Df[j]}, {d}')
                a(f'v_mul_f32 {d}, {ge[i]}, {d}')
        a(f'v_bfe_u32 {T[20]}, {vl}, 2, 1')
        a(f'v_and_b32 {T[21]}, 3, {vl}')
        a(f'v_lshl_add_u32 {T[20]}, {T[20]}, 4, {T[21]}')
        a(f'v_bfe_u32 {T[21]}, {vl}, 3, 2')
        a(f'v_lshl_add_u32 {T[20]}, {T[21]}, 2, {T[20]}')
        a(f's_lshl_b32 {st2}, {sw}, 13')
        a(f'v_lshl_add_u32 {T[20]}, {T[20]}, 8, {st2}')
        a(f'v_and_b32 {T[21]}, 7, {vl}')
        a(f'v_xor_b32 {T[21]}, {T[21]}, {vh}')
        a(f'v_lshl_add_u32 {aRw[0]}, {T[21]}, 4, {T[20]}')
        for k in range(1, 4):
            a(f'v_xor_b32 {aRw[k]}, {32 * k}, {aRw[0]}')
        a(f'v_and_b32 {T[21]}, 3, {T[10]}')
        a(f'v_xor_b32 {T[21]}, {T[21]}, {T[12]}')
        a(f'v_lshlrev_b32 {T[21]}, 4, {T[21]}')
        a(f'v_lshl_add_u32 {aRr[0]}, {T[10]}, 8, {T[21]}')
        a(f'v_xor_b32 {aRr[1]}, 64, {aRr[0]}')
        sPs, sPl, sFs, sFl = sW2b[0], sW2b[1], sW2b[2], sTmp
        a(f's_mul_i32 {st2}, {steam}, 7')
        a(f's_add_u32 {st2}, {st2}, {sct}')
        a(f's_lshl_b32 {sFs}, {st2}, 6')
        a(f's_add_u32 {sFs}, {sFs}, {WS_PFL}')
        a(f's_lshl_b32 {sPs}, {st2}, 14')
        a(f's_add_u32 {sPs}, {sPs}, {sM4}')
        a(f's_add_u32 {sPs}, {sPs}, {WS_PART}')
        a(f's_xor_b32 {st2}, {steam}, 1')
        a(f's_mul_i32 {st2}, {st2}, 7')
        a(f's_add_u32 {st2}, {st2}, {sct}')
        a(f's_lshl_b32 {sFl}, {st2}, 6')
        a(f's_add_u32 {sFl}, {sFl}, {WS_PFL}')
        a(f's_lshl_b32 {sPl}, {st2}, 14')
        a(f's_add_u32 {sPl}, {sPl}, {sM4}')
        a(f's_add_u32 {sPl}, {sPl}, {WS_PART}')
        se = []
        a = se.append
        pk = hidL[16:32]
        for q in range(16):
            a(f'v_cvt_pk_bf16_f32 {pk[q]}, {accSend[2 * q]}, {accSend[2 * q + 1]}')
        mark = {}
        def pstores():
            mark['nl'] = mark['cur']
            for j in range(4):
                e(I(f'buffer_store_dwordx4 {pk[4 * j:4 * j + 4]}, {oH[0]}, {rWS}, {sPs} offen offset:{1024 * j} sc1', tag='part'))
        a(pstores)
        rp = hidL[32:48]

        for i in range(PF):
            for x in rd2(12 + i):
                e(x)
        sent = False
        nl_at_store = None
        for idx in range(12, 84):
            n = idx - 12
            mf = mf2(idx)
            rd = rd2(idx + PF) if idx + PF < 84 else []
            if nl_at_store is not None and not sent and n == nl_at_store:
                while nl < 72 and nl < n + NW - 1 and nl < n + 2 * AL:
                    aload(nl); nl += 1
                e(WaitTag('part'))
                e(f's_lshl_b32 s3, 1, {sw}')
                e(f's_atomic_add s3, {pws}, {sFs} glc')
                sent = True
            e(mf[0])
            for x in rd[:len(rd) // 2]:
                e(x)
            if nl < 72 and nl < n + NW - 1:
                aload(nl); nl += 1
            side = sd if n < 36 else se
            mark['cur'] = nl
            if n != 36:
                self.run_side(side, 2 if n < 36 else 3)
            e(mf[1])
            for x in rd[len(rd) // 2:]:
                e(x)
            self.run_side(side, 3)
            nl_at_store = mark.get('nl')
            if n == 35:
                assert not sd
            if n == 36 + 12:
                self.barrier()
            if n == o.get('ppoll', 62):
                assert sent
                e(f's_load_dword {sPoll[0]}, {pws}, {sFl} glc')
            if n == o.get('pload', 67):
                self.spoll([sPoll[0]], pws, [sFl], [f's_bitcmp1_b32 {sPoll[0]}, {sw}'], 'part')
                for j in range(4):
                    e(f'buffer_load_dwordx4 {rp[4 * j:4 * j + 4]}, {oH[0]}, {rWS}, {sPl} offen offset:{1024 * j} sc1')
        assert self.unit[0]['free'] and self.unit[3]['free']
        self.stamp()
        for n in range(2):
            for k in range(4):
                for b in range(4):
                    q = 16 * n + 4 * k + b
                    src = rp[q // 2]
                    tt = T[b]
                    e(f'v_lshlrev_b32 {tt}, 16, {src}' if b % 2 == 0 else f'v_and_b32 {tt}, 0xffff0000, {src}')
                    e(f'v_add_f32 {accOwn[q]}, {tt}, {accOwn[q]}')
                e(f'ds_write_b128 {aRw[k]}, {accOwn[16 * n + 4 * k:16 * n + 4 * k + 4]} offset:{128 * n}')
        self.barrier(dsw=True)
        for i in range(4):
            e(f'ds_read_b128 {T[8 * i:8 * i + 4]}, {aRr[i & 1]} offset:{4096 * i}')
            e(f'ds_read_b128 {T[8 * i + 4:8 * i + 8]}, {aRr[i & 1]} offset:{4096 * i + 16384}')
        for i in range(4):
            for j in range(4):
                e(f'v_add_f32 {ev[4 * i + j]}, {T[8 * i + j]}, {ev[4 * i + j]}')
            for j in range(4):
                e(f'v_add_f32 {ev[4 * i + j]}, {T[8 * i + 4 + j]}, {ev[4 * i + j]}')
            e(f's_mov_b32 {st0}, {16 * 1792 * i}')
            e(f'buffer_store_dwordx4 {ev[4 * i:4 * i + 4]}, {oO}, {rOUT}, {st0} offen {o["outst"]}')
        if o['stamps']:
            e('s_waitcnt vmcnt(0)')
            e(f'{self.stop} {sPoll}')
            e('s_waitcnt lgkmcnt(0)')
            for k in range(8):
                e(f'v_mov_b32 {T[k]}, {self.sST[2 * k]}')
            e(f'v_mov_b32 {T[8]}, {sPoll[0]}')
            e(f'v_mov_b32 {T[9]}, {sfast}')
            e(f's_lshl_b32 {st0}, s2, 2')
            e(f's_add_u32 {st0}, {st0}, {sw}')
            e(f's_lshl_b32 {st0}, {st0}, 6')
            e(f's_add_u32 {st0}, {st0}, {WS_STAMP}')
            e(f'v_mov_b32 {T[12]}, 0')
            for k in range(3):
                e(f'buffer_store_dwordx4 {T[4 * k:4 * k + 4]}, {T[12]}, {rWS}, {st0} offen offset:{16 * k}')
        e('s_endpgm')

        h = [
            'L_helper:',
            f'    s_cmp_ge_u32 s2, {NCLR}',
            '    s_cbranch_scc1 ' + ('L_calib' if o.get('calib') else 'L_end'),
            f'    s_lshl_b32 {st0}, s2, 12',
            f'    v_lshl_add_u32 {T[4]}, v0, 4, {st0}',
            f'    s_cmp_lt_u32 s2, {WS_HFL // 4096}',
            f'    s_cselect_b32 {st1}, -1, 0',
            f'    v_mov_b32 {T[8]}, {st1}', f'    v_mov_b32 {T[9]}, {st1}',
            f'    v_mov_b32 {T[10]}, {st1}', f'    v_mov_b32 {T[11]}, {st1}',
            '    s_waitcnt lgkmcnt(0)',
            f'    s_mov_b32 {rX[0]}, {pws[0]}', f'    s_mov_b32 {rX[1]}, {pws[1]}',
            f'    s_mov_b32 {rX[2]}, {WS_CLR_END}', f'    s_mov_b32 {rX[3]}, 0x20000',
            f'    buffer_store_dwordx4 {T[8:12]}, {T[4]}, {rX}, 0 offen sc1',
            '    s_waitcnt vmcnt(0)',
            '    s_barrier',
            f'    s_cmp_lg_u32 {sw}, 0',
            '    s_cbranch_scc1 L_end',
            f'    s_mov_b32 {st1}, 1',
            f'    s_atomic_add {st1}, {pdbg}, 0 glc',
            '    s_waitcnt lgkmcnt(0)',
            'L_end:',
            '    s_endpgm']
        if o.get('calib'):
            h += ['L_calib:', '    s_waitcnt lgkmcnt(0)', '    s_memrealtime s[40:41]', '    s_waitcnt lgkmcnt(0)',
                  f'    s_add_u32 s42, s40, {o["calib"]}', 'L_cs:', '    s_memrealtime s[40:41]', '    s_waitcnt lgkmcnt(0)',
                  '    s_sub_u32 s43, s40, s42', '    s_cmp_lt_i32 s43, 0', '    s_cbranch_scc1 L_cs', '    s_endpgm']
        prog = insert_nops(insert_waits(self.p))
        self.stats = dict(n=len(prog), est=self.t, vhi=V.hi, ahi=A.hi, shi=S.hi)
        body = render(prog) + '\n' + '\n'.join(self.tail) + '\n' + '\n'.join(h)
        return body


def make(**kw):
    g = Gen(**kw)
    body = g.build()
    ref = open(f'cdna_kernels/{NAME}.s.ref').read().split('\n')
    head = [l for l in ref if l.startswith(';') and '@launch' not in l][:18]
    txt = '\n'.join(head) + '\n; @launch grid=(256,1,1) block=(256,1,1) lds=163840\n'
    txt += f'''.amdgcn_target "amdgcn-amd-amdhsa--gfx950"
.text
.globl {NAME}_kernel
.p2align 8
.type {NAME}_kernel,@function
{NAME}_kernel:
{body}
.section .rodata,"a"
.p2align 6
.amdhsa_kernel {NAME}_kernel
  .amdhsa_next_free_vgpr 512
  .amdhsa_next_free_sgpr 102
  .amdhsa_accum_offset 256
  .amdhsa_group_segment_fixed_size 0
  .amdhsa_kernarg_size 128
  .amdhsa_user_sgpr_count 2
  .amdhsa_user_sgpr_kernarg_segment_ptr 1
  .amdhsa_system_sgpr_workgroup_id_x 1
.end_amdhsa_kernel
'''
    return txt, g.stats


if __name__ == '__main__':
    out = sys.argv[1]
    kw = {}
    for x in sys.argv[2:]:
        k, v = x.split('=', 1)
        try:
            v = int(v)
        except ValueError:
            pass
        kw[k] = v
    txt, st = make(**kw)
    open(out, 'w').write(txt)
    print(out, st)
```
